```python
import torch

def _softmax(x, axis=-1):
    return torch.softmax(x, dim=axis)

def _gelu(x):
    return torch.nn.functional.gelu(x, approximate='tanh')

def _silu(x):
    return torch.nn.functional.silu(x)

def _sigmoid(x):
    return torch.sigmoid(x)

def _layernorm(x, axis=-1, eps=1e-05):
    m = x.mean(dim=axis, keepdim=True)
    v = x.var(dim=axis, keepdim=True, unbiased=False)
    return (x - m) / torch.sqrt(v + eps)

def _scatter_add(tgt, idx, src, axis=0):
    return tgt.clone().index_add_(axis, idx, src)

def _segment_sum(src, seg, n):
    out = torch.zeros((n,) + src.shape[1:], dtype=src.dtype)
    return out.index_add_(0, seg, src)

def _pad(x, pw):
    flat = tuple((v for pair in reversed(pw) for v in pair))
    return torch.nn.functional.pad(x, flat)
kernel_name = 'adaLN_cond__sliding_block_cached__swiglu_ffn__decode'

def setup_inputs():

    _w = lambda a: (lambda t: t.to(torch.bfloat16) if t.is_floating_point() else t)(torch.as_tensor(a))

    def _A_setup():
        B, Sq, D = (8, 1, 512)
        Hq, Hkv, Sk, Dh = (32, 8, 8192, 128)
        assert Hq % Hkv == 0, (Hq, Hkv)
        return {'x': _w((lambda *s: torch.randn(*s, dtype=torch.bfloat16) * 0.05)(B, Sq, D)), 'k_cache': _w((lambda *s: torch.randn(*s, dtype=torch.bfloat16) * 3.2)(B, Hkv, Sk, Dh)), 'v_cache': _w((lambda *s: torch.randn(*s, dtype=torch.bfloat16) * 0.4)(B, Hkv, Sk, Dh)), 'wq': _w((lambda *s: torch.randn(*s, dtype=torch.bfloat16) * 3.2)(D, Hq * Dh) * D ** (-0.5)), 'wo': _w((lambda *s: torch.randn(*s, dtype=torch.bfloat16) * 0.4)(Hq * Dh, D) * (Hq * Dh) ** (-0.5))}
    _A_in = _A_setup()

    def _B_setup():
        B, S, D, F = (8, 1, 512, 1792)
        return {'x': _w((lambda *s: torch.randn(*s, dtype=torch.bfloat16) * 0.05)(B, S, D)), 'w_gate': _w((lambda *s: torch.randn(*s, dtype=torch.bfloat16) * 0.05)(D, F)), 'w_up': _w((lambda *s: torch.randn(*s, dtype=torch.bfloat16) * 0.05)(D, F)), 'w_down': _w((lambda *s: torch.randn(*s, dtype=torch.bfloat16) * 0.05)(F, D))}
    _B_in = _B_setup()
    return {'A_x': _A_in['x'], 'A_k_cache': _A_in['k_cache'], 'A_v_cache': _A_in['v_cache'], 'A_wq': _A_in['wq'], 'A_wo': _A_in['wo'], 'B_x': _B_in['x'], 'B_w_gate': _B_in['w_gate'], 'B_w_up': _B_in['w_up'], 'B_w_down': _B_in['w_down'], 'c': _w((lambda *s: torch.randn(*s, dtype=torch.bfloat16) * 0.1)(8, 512) * 8.0), 'w_mod': _w((lambda *s: torch.randn(*s, dtype=torch.bfloat16) * 0.1)(512, 6 * 512) * 512 ** (-0.5) * 8.0)}

def reference(A_x, A_k_cache, A_v_cache, A_wq, A_wo, B_x, B_w_gate, B_w_up, B_w_down, c, w_mod):

    def _A_ref(x, k_cache, v_cache, wq, wo):
        B, Sq, D = x.shape
        Hq, Dh = (32, 128)
        Hkv, Sk = (k_cache.shape[1], k_cache.shape[2])
        W = min(4096, max(256, Sk // 4))
        rep = Hq // Hkv
        q = (lambda x, *d: x.permute(*d))((x @ wq).reshape(B, Sq, Hq, Dh), 0, 2, 1, 3)
        k = (lambda x, n, axis: torch.repeat_interleave(x, n, dim=axis))(k_cache[:, :, Sk - W:, :], rep, axis=1)
        v = (lambda x, n, axis: torch.repeat_interleave(x, n, dim=axis))(v_cache[:, :, Sk - W:, :], rep, axis=1)
        scores = torch.einsum('bhqd,bhkd->bhqk', q, k) * Dh ** (-0.5)
        p = _softmax(scores, axis=-1)
        o = torch.einsum('bhqk,bhkd->bhqd', p, v)
        return (lambda x, *d: x.permute(*d))(o, 0, 2, 1, 3).reshape(B, Sq, Hq * Dh) @ wo

    def _B_ref(x, w_gate, w_up, w_down):
        g = _silu(x @ w_gate)
        u = x @ w_up
        return g * u @ w_down
    x = A_x
    mod = (_silu(c) @ w_mod).reshape(c.shape[0], 6, 1, -1)
    sa, ca, ga, sb, cb, gb = (mod[:, 0].clone(), mod[:, 1].clone(), mod[:, 2].clone(), mod[:, 3].clone(), mod[:, 4].clone(), mod[:, 5].clone())
    h = _layernorm(x, axis=-1) * (1 + ca) + sa
    x = x + ga * _A_ref(h, A_k_cache, A_v_cache, A_wq, A_wo)
    h = _layernorm(x, axis=-1) * (1 + cb) + sb
    x = x + gb * _B_ref(h, B_w_gate, B_w_up, B_w_down)
    return x
```

```python
import re

TRANS = ('v_exp_f32', 'v_log_f32', 'v_rcp_f32', 'v_rsq_f32', 'v_sqrt_f32', 'v_sin_f32', 'v_cos_f32')
REG_RE = re.compile(r'^-?(?:abs\()?\|?([vsa])(?:(\d+)|\[(\d+):(\d+)\])\)?\|?$')

def regs_of(tok):
    tok = tok.strip()
    if tok in ('vcc',): return {('s', 'vcc')}
    if tok in ('vcc_lo', 'vcc_hi'): return {('s', 'vcc')}
    if tok in ('exec', 'exec_lo', 'exec_hi'): return {('s', 'exec')}
    if tok == 'm0': return {('s', 'm0')}
    m = REG_RE.match(tok)
    if not m: return set()
    f = m.group(1)
    if m.group(2) is not None: lo = hi = int(m.group(2))
    else: lo, hi = int(m.group(3)), int(m.group(4))
    return {(f, i) for i in range(lo, hi + 1)}

def split_ops(rest):
    ops = []; cur = ''; depth = 0
    for ch in rest:
        if ch in '[(': depth += 1
        if ch in '])': depth -= 1
        if ch == ',' and depth == 0:
            ops.append(cur.strip()); cur = ''
        else: cur += ch
    if cur.strip(): ops.append(cur.strip())
    mods = ''
    if ops:
        parts = ops[-1].split(None, 1)
        ops[-1] = parts[0]
        if len(parts) > 1: mods = parts[1]
    return ops, mods

class Ins:
    def __init__(self, text):
        self.text = text
        t = text.split(';')[0].strip()
        parts = t.split(None, 1)
        self.op = parts[0]
        self.ops, self.mods = split_ops(parts[1]) if len(parts) > 1 else ([], '')
        op = self.op
        self.kind = 'other'
        R = [regs_of(o) for o in self.ops]
        U = lambda idx: set().union(*[R[i] for i in idx if i < len(R)]) if idx else set()
        n = len(R)
        self.w = set(); self.r = set(); self.srcc = set(); self.ab = set(); self.sdata = set()
        if op.startswith('v_mfma'):
            self.kind = 'mfma'; self.w = R[0]; self.ab = R[1] | R[2]; self.srcc = R[3]; self.r = self.ab | self.srcc
            self.passes = 8 if '32x32' in op else 4
        elif op.startswith('v_'):
            self.kind = 'valu'
            if 'swap' in op:
                self.w = R[0] | R[1]; self.r = R[0] | R[1]
            elif op.startswith(('v_add_co', 'v_sub_co', 'v_addc_co', 'v_subb_co', 'v_subrev_co', 'v_mad_u64', 'v_div_scale')):
                self.w = R[0] | R[1]; self.r = U(range(2, n))
            else:
                self.w = R[0]; self.r = U(range(1, n))
                if op.startswith(('v_fmac', 'v_mac', 'v_pk_fmac', 'v_dot2c', 'v_writelane')) or 'dpp' in op or 'row_' in self.mods or 'quad_perm' in self.mods:
                    self.r |= R[0]
            self.trans = op.split('_e')[0] in TRANS or op in TRANS
            self.dpp = 'dpp' in op or 'row_' in self.mods or 'quad_perm' in self.mods
            self.perml = op.startswith('v_permlane')
            self.rdl = op.startswith(('v_readlane', 'v_readfirstlane'))
        elif op.startswith(('buffer_', 'global_', 'flat_')):
            self.kind = 'vmem'
            self.ldsdma = bool(re.search(r'\blds\b', self.mods)) or '_lds_' in op
            if op in ('buffer_wbl2', 'buffer_inv'):
                pass
            elif 'load' in op and not self.ldsdma:
                self.w = R[0]; self.r = U(range(1, n))
            elif 'store' in op:
                self.r = U(range(0, n))
                d = R[0] if op.startswith('buffer_') else R[1]
                if 'x3' in op or 'x4' in op: self.sdata = d
            elif 'atomic' in op:
                self.r = U(range(0, n))
                if 'sc0' in self.mods: self.w = R[0]
            else:
                self.r = U(range(0, n))
        elif op.startswith('ds_'):
            self.kind = 'ds'
            if op.startswith(('ds_read', 'ds_bpermute', 'ds_permute', 'ds_swizzle')) or '_rtn' in op:
                self.w = R[0]; self.r = U(range(1, n))
            else:
                self.r = U(range(0, n))
        elif op.startswith('s_'):
            self.kind = 'salu'
            if op.startswith(('s_cmp', 's_cbranch', 's_branch', 's_waitcnt', 's_nop', 's_barrier', 's_sleep', 's_setprio', 's_endpgm', 's_bitcmp', 's_setpc', 's_set_gpr')):
                self.r = U(range(0, n))
            else:
                self.w = R[0] if n else set(); self.r = U(range(1, n))
        self.states = 1
        if op == 's_nop': self.states = int(self.ops[0], 0) + 1

def required(p, c):
    need = 0
    vw = {x for x in p.w if x[0] in 'va'}
    sw = {x for x in p.w if x[0] == 's'}
    if p.kind == 'valu':
        if vw & c.r:
            if c.kind == 'mfma': need = max(need, 2)
            if c.kind == 'valu':
                if c.dpp or c.perml: need = max(need, 2)
                if c.rdl: need = max(need, 1)
                if p.trans and not c.trans: need = max(need, 1)
            if p.trans and c.kind != 'valu': need = max(need, 1)
        if sw & c.r:
            if c.kind == 'valu': need = max(need, 4 if (c.rdl or c.op.startswith('v_writelane')) else 2)
            if c.kind == 'mfma': need = max(need, 2)
            if c.kind == 'vmem': need = max(need, 5)
        if ('s', 'exec') in sw and c.kind in ('valu', 'mfma'): need = max(need, 5)
    if p.kind == 'mfma':
        big = {4: 8, 8: 12}[p.passes]; part = {4: 6, 8: 10}[p.passes]; war = {4: 3, 8: 7}[p.passes]
        if c.kind == 'mfma':
            if p.w & c.ab: need = max(need, big)
            if p.w & c.srcc and not (p.w == c.srcc and p.passes == c.passes): need = max(need, part)
            if p.w & c.w and not (p.w == c.srcc): need = max(need, big)
        else:
            if p.w & (c.r | c.w): need = max(need, big)
            if c.kind == 'valu' and p.srcc & c.w: need = max(need, war)
    if p.kind == 'vmem' and p.sdata and p.sdata & c.w:
        need = max(need, 2 if c.kind in ('valu', 'mfma') else 1)
    if p.kind == 'salu' and ('s', 'm0') in p.w:
        if (c.kind == 'vmem' and c.ldsdma) or c.op.startswith('s_movrel'): need = max(need, 1)
    return need

MAXD = 12

class Asm:
    def __init__(self):
        self.lines = []
        self.uid = 0
    def __call__(self, s):
        for l in s.split('\n'):
            l = l.strip()
            if l: self.lines.append(l)
    def label(self, name): self.lines.append(name + ':')
    def newlabel(self, base='L'):
        self.uid += 1
        return f'{base}_{self.uid}'
    def comment(self, s): self.lines.append('; ' + s)
    def finalize(self):
        out = []
        pend = []
        saved = {}
        seen = set()
        def worst(p):
            if p.kind == 'mfma': return {4: 8, 8: 12}[p.passes]
            if p.kind == 'valu': return 5 if any(x[0] == 's' for x in p.w) else 2
            if p.kind == 'vmem' and p.sdata: return 2
            if p.kind == 'salu' and ('s', 'm0') in p.w: return 1
            return 0
        def advance(n):
            for e in pend: e[1] += n
            pend[:] = [e for e in pend if e[1] < worst(e[0])]
        def pad(n):
            while n > 0:
                k = min(n, 16)
                out.append(f'    s_nop {k-1}'); advance(k); n -= k
        for l in self.lines:
            if l.startswith(';') or l.startswith('.'):
                out.append('    ' + l); continue
            if l.endswith(':'):
                name = l[:-1]; seen.add(name)
                for st in saved.get(name, []):
                    pend.extend([[p, d] for p, d in st])
                out.append(l); continue
            ins = Ins(l)
            need = 0
            for p, d in pend:
                need = max(need, required(p, ins) - d)
            isbr = ins.op.startswith(('s_cbranch', 's_branch', 's_call', 's_setpc', 's_swappc'))
            if isbr and (ins.op.startswith(('s_call', 's_setpc', 's_swappc')) or ins.ops[-1] in seen):
                for p, d in pend:
                    need = max(need, worst(p) - d - 1)
            if need > 0: pad(need)
            out.append('    ' + l)
            advance(ins.states)
            if isbr and not ins.op.startswith(('s_call', 's_setpc', 's_swappc')) and ins.ops[-1] not in seen:
                saved.setdefault(ins.ops[-1], []).append([[p, d] for p, d in pend])
            if ins.op in ('s_branch', 's_endpgm', 's_setpc_b64'):
                pend.clear()
            if worst(ins) > 0: pend.append([ins, 0])
        return '\n'.join(out)

class Regs:
    def __init__(self, start, limit, pfx):
        self.n = start; self.limit = limit; self.pfx = pfx; self.hi = start
    def alloc(self, cnt=1, align=1):
        self.n = (self.n + align - 1) // align * align
        r = self.n; self.n += cnt
        assert self.n <= self.limit, f'out of {self.pfx} regs: {self.n}'
        self.hi = max(self.hi, self.n)
        return r
    def mark(self): return self.n
    def release(self, m): self.n = m

def vr(r, n=1): return f'v{r}' if n == 1 else f'v[{r}:{r+n-1}]'
def sr(r, n=1): return f's{r}' if n == 1 else f's[{r}:{r+n-1}]'
```

```python
KNAME = 'adaLN_cond__sliding_block_cached__swiglu_ffn__decode'
HEADER_COMMENTS = """; Kernarg layout for this problem (112 bytes, ptrs only, base s[0:1]):
"""

def wrap_single(body, grid, block, lds, vgpr=256, sgpr=102, accum=None):
    if accum is None:
        accum = min(256, (vgpr + 3) // 4 * 4)
    return HEADER_COMMENTS + f"""; @launch grid=({grid},1,1) block=({block},1,1) lds={lds}
.amdgcn_target "amdgcn-amd-amdhsa--gfx950"
.text
.globl {KNAME}_kernel
.p2align 8
.type {KNAME}_kernel,@function
{KNAME}_kernel:
{body}
.section .rodata,"a"
.p2align 6
.amdhsa_kernel {KNAME}_kernel
  .amdhsa_next_free_vgpr {vgpr}
  .amdhsa_next_free_sgpr {sgpr}
  .amdhsa_accum_offset {accum}
  .amdhsa_group_segment_fixed_size 0
  .amdhsa_kernarg_size 112
  .amdhsa_user_sgpr_count 2
  .amdhsa_user_sgpr_kernarg_segment_ptr 1
  .amdhsa_system_sgpr_workgroup_id_x 1
.end_amdhsa_kernel
"""
```

```python
import sys, argparse
from asmlib import *
from gen_common import HEADER_COMMENTS, KNAME

WS_MOD = 0x00000
WS_Q   = 0x10000
WS_O   = 0x20000
WS_X1P = 0x30000
WS_ACT = 0x40000
WS_SC  = 0x100000
WS_TS  = 0x400000
WS_SIZE = 0x800000

LDS_K = 0
LDS_ML = 131072
LDS_BYTES = 131072 + 1024

LOG2E = 0x3fb8aa3b
SCALE = 0x3db504f3
EPS = 0x3727c5ac

class Cfg:
    depth = 4
    stamps = False
    wflags = ' nt'
    kvflags = ' nt'
    spin_cap = 400000

S_WG, S_WAVE = 2, 3
P_X, P_K, P_V, P_WQ, P_WO, P_BX, P_WG, P_WU, P_WD, P_C, P_WM, P_OUT, P_DBG, P_WS = [16 + 2 * i for i in range(14)]
SRD_WS, SRD_DBG, SRD_A, SRD_B, SRD_C = 44, 48, 52, 56, 60
S_PLO, S_PHI = 64, 65
S_X, S_Y = 66, 67
S_T = 68
S_CNT = 79
S_STAMP = 80
S_TM = 96
S_SAVE = 98

class K:
    def __init__(self, cfg):
        self.cfg = cfg
        self.a = Asm()
        self.nstamp = 0
    def srd(self, s, p, nbytes):
        a = self.a
        a(f's_mov_b32 s{s}, s{p}'); a(f's_and_b32 s{s+1}, s{p+1}, 0xffff')
        a(f's_mov_b32 s{s+2}, {nbytes}'); a(f's_mov_b32 s{s+3}, 0x20000')
    def stamp(self, i):
        if not self.cfg.stamps: return
        a = self.a
        a(f's_memrealtime s[{S_TM}:{S_TM+1}]'); a('s_waitcnt lgkmcnt(0)'); a(f's_mov_b32 s{S_STAMP+i}, s{S_TM}')
    def dump_stamps(self, vt):
        if not self.cfg.stamps: return
        a = self.a
        a('s_mov_b64 exec, 1')
        for i in range(16): a(f'v_mov_b32 v{vt+i}, s{S_STAMP+i}')
        a(f's_lshl_b32 s{S_T}, s{S_WG}, 3'); a(f's_add_u32 s{S_T}, s{S_T}, s{S_WAVE}'); a(f's_lshl_b32 s{S_T}, s{S_T}, 6')
        a(f's_add_u32 s{S_T}, s{S_T}, {WS_TS}')
        for q in range(4):
            a(f'buffer_store_dwordx4 v[{vt+4*q}:{vt+4*q+3}], off, s[{SRD_WS}:{SRD_WS+3}], s{S_T} offset:{16*q}')
    def set_exec(self, lo, hi):
        self.a(f's_mov_b32 exec_lo, {lo:#x}'); self.a(f's_mov_b32 exec_hi, {hi:#x}')
    def full_exec(self): self.a('s_mov_b64 exec, -1')
    def unpack(self, lo, hi, src):
        self.a(f'v_lshlrev_b32 v{lo}, 16, v{src}'); self.a(f'v_and_b32 v{hi}, 0xffff0000, v{src}')
    def round2(self, x0, x1, tmp):
        self.a(f'v_cvt_pk_bf16_f32 v{tmp}, v{x0}, v{x1}')
        self.unpack(x0, x1, tmp)
    def check_invalid(self, regs, vt):
        a = self.a
        regs = list(regs)
        if len(regs) == 1:
            a(f'v_cmp_eq_u32 vcc, -1, v{regs[0]}'); return
        if len(regs) == 2:
            a(f'v_max_u32 v{vt}, v{regs[0]}, v{regs[1]}'); rest = []
        else:
            a(f'v_max3_u32 v{vt}, v{regs[0]}, v{regs[1]}, v{regs[2]}'); rest = regs[3:]
        while len(rest) >= 2:
            a(f'v_max3_u32 v{vt}, v{vt}, v{rest[0]}, v{rest[1]}'); rest = rest[2:]
        if rest: a(f'v_max_u32 v{vt}, v{vt}, v{rest[0]}')
        a(f'v_cmp_eq_u32 vcc, -1, v{vt}')
    def poll(self, issue, regs, vt, sleep=1, first_issued_wait=None):
        a = self.a
        Lp, Lc, Ld = a.newlabel('Lpoll'), a.newlabel('Lchk'), a.newlabel('Ldone')
        a(f's_mov_b32 s{S_CNT}, 0')
        if first_issued_wait is not None:
            a(f's_waitcnt vmcnt({first_issued_wait})')
            a(f's_branch {Lc}')
        a.label(Lp)
        issue()
        a('s_waitcnt vmcnt(0)')
        a.label(Lc)
        self.check_invalid(regs, vt)
        a(f's_cbranch_vccz {Ld}')
        if sleep: a(f's_sleep {sleep}')
        a(f's_add_u32 s{S_CNT}, s{S_CNT}, 1')
        a(f's_cmp_lt_u32 s{S_CNT}, {self.cfg.spin_cap}')
        a(f's_cbranch_scc1 {Lp}')
        a.label(Ld)
    def token_issue(self, vd, vlane4):
        if self.cfg.notok: return
        self.a(f'buffer_load_dword v{vd}, v{vlane4}, s[{SRD_DBG}:{SRD_DBG+3}], 0 offen sc1')
    def token_wait(self, vd, vlane4, sleep=4, first_issued_wait=None):
        a = self.a
        if self.cfg.notok: return
        Lp, Lc, Ld = a.newlabel('Ltok'), a.newlabel('Ltchk'), a.newlabel('Ltdone')
        a(f's_mov_b32 s{S_CNT}, 0')
        if first_issued_wait is not None:
            a(f's_waitcnt vmcnt({first_issued_wait})'); a(f's_branch {Lc}')
        a.label(Lp)
        self.token_issue(vd, vlane4)
        a('s_waitcnt vmcnt(0)')
        a.label(Lc)
        a(f'v_cmp_ne_u32 vcc, 0x01010101, v{vd}')
        a(f's_cbranch_vccz {Ld}')
        a(f's_sleep {sleep}')
        a(f's_add_u32 s{S_CNT}, s{S_CNT}, 1')
        a(f's_cmp_lt_u32 s{S_CNT}, {self.cfg.spin_cap}')
        a(f's_cbranch_scc1 {Lp}')
        a.label(Ld)
    def token_store(self, vt):
        a = self.a
        if self.cfg.notok: return
        a('s_mov_b64 exec, 1')
        a(f'v_mov_b32 v{vt}, 1')
        a(f'buffer_store_byte v{vt}, off, s[{SRD_DBG}:{SRD_DBG+3}], s{S_WG} sc1')
        self.full_exec()
    def xl_reduce(self, op, x, t0, t1, bits):
        a = self.a
        ins = {'add': 'v_add_f32', 'max': 'v_max_f32'}[op]
        for b in bits:
            if b in (2, 3):
                a(f'{ins}_dpp v{x}, v{x}, v{x} row_ror:{1 << b} row_mask:0xf bank_mask:0xf')
            else:
                a(f'v_mov_b32 v{t0}, v{x}')
                a(f'v_permlane{16 if b == 4 else 32}_swap_b32 v{x}, v{t0}')
                a(f'{ins} v{x}, v{x}, v{t0}')
    def pack_rows(self, d4, x):
        a = self.a
        a(f'v_mov_b32 v{d4}, v{x}'); a(f'v_mov_b32 v{d4+1}, v{x}')
        a(f'v_permlane16_swap_b32 v{d4}, v{d4+1}')
        a(f'v_mov_b32 v{d4+2}, v{d4}'); a(f'v_mov_b32 v{d4+3}, v{d4+1}')
        a(f'v_permlane32_swap_b32 v{d4}, v{d4+2}')
        a(f'v_permlane32_swap_b32 v{d4+1}, v{d4+3}')
    def w_loads(self, raw, nd, srd, voff, sbase, RS, nblk, flags):
        a = self.a
        opn = {1: 'dword', 2: 'dwordx2', 3: 'dwordx3', 4: 'dwordx4'}[nd]
        ndp = 4 if nd == 3 else nd
        cur = 0
        for blk in range(nblk):
            for j in range(8):
                off = (blk * 64 + j) * RS
                if off - cur > 4095:
                    a(f's_add_u32 s{sbase}, s{sbase}, {off - cur}'); cur = off
                r = raw + (blk * 8 + j) * ndp
                a(f'buffer_load_{opn} {vr(r, nd)}, v{voff}, s[{srd}:{srd+3}], s{sbase} offen offset:{off-cur}{flags}')
    def w_transpose(self, dst, raw, nd):
        a = self.a
        ndp = 4 if nd == 3 else nd
        for d in range(nd):
            for e in range(2):
                for kk in range(4):
                    a(f'v_perm_b32 v{dst + (2*d+e)*4 + kk}, v{raw + (2*kk+1)*ndp + d}, v{raw + (2*kk)*ndp + d}, s{S_PHI if e else S_PLO}')
    def mfma(self, acc, A, B, first):
        self.a(f'v_mfma_f32_16x16x32_bf16 v[{acc}:{acc+3}], v[{A}:{A+3}], v[{B}:{B+3}], {"0" if first else f"v[{acc}:{acc+3}]"}')
    def lane_gsc(self, vg, vs, vc, vlane):
        a = self.a
        a(f'v_lshrrev_b32 v{vg}, 4, v{vlane}'); a(f'v_bfe_u32 v{vs}, v{vlane}, 3, 1'); a(f'v_and_b32 v{vc}, 7, v{vlane}')
    def part_write(self, accs, vaddr, step):
        a = self.a
        self.set_exec(0x00ff00ff, 0xff00ff00)
        for i, acc in enumerate(accs):
            a(f'ds_write_b128 v{vaddr}, v[{acc}:{acc+3}] offset:{step[i] if isinstance(step, list) else i*step}')
        self.full_exec()
        a('s_waitcnt lgkmcnt(0)')
        a('s_barrier')
    def part_sum(self, res, tmp, vaddr, nparts, stride64):
        a = self.a
        for p in range(0, nparts, 2):
            a(f'ds_read2st64_b32 v[{tmp+p}:{tmp+p+1}], v{vaddr} offset0:{p*stride64} offset1:{(p+1)*stride64}')
        n = nparts // 2
        for q in range(n):
            a(f's_waitcnt lgkmcnt({n-1-q})')
            if q == 0: a(f'v_add_f32 v{res}, v{tmp}, v{tmp+1}')
            else:
                a(f'v_add_f32 v{tmp+2*q}, v{tmp+2*q}, v{tmp+2*q+1}'); a(f'v_add_f32 v{res}, v{res}, v{tmp+2*q}')
    def ln_stats(self, x8, mean, rinv, t, vst_w, vst_r):
        a = self.a
        s, m2, d = t, t + 1, t + 2
        a(f'v_add_f32 v{s}, v{x8}, v{x8+1}'); a(f'v_add_f32 v{d}, v{x8+2}, v{x8+3}')
        a(f'v_add_f32 v{m2}, v{x8+4}, v{x8+5}'); a(f'v_add_f32 v{d+1}, v{x8+6}, v{x8+7}')
        a(f'v_add_f32 v{s}, v{s}, v{d}'); a(f'v_add_f32 v{m2}, v{m2}, v{d+1}'); a(f'v_add_f32 v{s}, v{s}, v{m2}')
        self.xl_reduce('add', s, d, d + 1, (3, 4, 5))
        a(f'v_mul_f32 v{s}, 0x3c800000, v{s}')
        for i in range(8):
            a(f'v_sub_f32 v{d}, v{x8+i}, v{s}')
            a(f'v_mul_f32 v{m2}, v{d}, v{d}' if i == 0 else f'v_fmac_f32 v{m2}, v{d}, v{d}')
        self.xl_reduce('add', m2, d, d + 1, (3, 4, 5))
        a('s_mov_b64 exec, 0xff')
        a(f'ds_write_b64 v{vst_w}, v[{s}:{s+1}]')
        self.full_exec()
        a('s_waitcnt lgkmcnt(0)'); a('s_barrier')
        q = t + 4
        for i in range(4): a(f'ds_read_b128 v[{q+4*i}:{q+4*i+3}], v{vst_r} offset:{16*i}')
        a('s_waitcnt lgkmcnt(0)')
        a(f'v_add_f32 v{s}, v{q}, v{q+2}'); a(f'v_add_f32 v{d}, v{q+4}, v{q+6}'); a(f'v_add_f32 v{d+1}, v{q+8}, v{q+10}')
        a(f'v_add_f32 v{m2}, v{q+12}, v{q+14}'); a(f'v_add_f32 v{s}, v{s}, v{d}'); a(f'v_add_f32 v{m2}, v{m2}, v{d+1}')
        a(f'v_add_f32 v{s}, v{s}, v{m2}'); a(f'v_mul_f32 v{s}, 0x3e000000, v{s}')
        a(f'v_add_f32 v{m2}, v{q+1}, v{q+3}')
        for i in range(2, 8): a(f'v_add_f32 v{m2}, v{m2}, v{q+2*i+1}')
        for i in range(8):
            a(f'v_sub_f32 v{d}, v{q+2*i}, v{s}')
            a(f'v_mul_f32 v{d+1}, v{d}, v{d}' if i == 0 else f'v_fmac_f32 v{d+1}, v{d}, v{d}')
        a(f'v_fmac_f32 v{m2}, 0x42800000, v{d+1}')
        a(f'v_mul_f32 v{m2}, 0x3b000000, v{m2}')
        self.round2(s, m2, d)
        a(f'v_mov_b32 v{mean}, v{s}')
        a(f'v_add_f32 v{m2}, {EPS:#x}, v{m2}')
        a(f'v_cvt_pk_bf16_f32 v{d}, v{m2}, v{m2}'); a(f'v_lshlrev_b32 v{m2}, 16, v{d}')
        a(f'v_sqrt_f32 v{m2}, v{m2}')
        a(f'v_cvt_pk_bf16_f32 v{d}, v{m2}, v{m2}'); a(f'v_lshlrev_b32 v{m2}, 16, v{d}')
        a(f'v_rcp_f32 v{rinv}, v{m2}')
    def ln_apply(self, x8, mean, rinv, tmp):
        a = self.a
        for i in range(0, 8, 2):
            a(f'v_sub_f32 v{x8+i}, v{x8+i}, v{mean}'); a(f'v_sub_f32 v{x8+i+1}, v{x8+i+1}, v{mean}')
            self.round2(x8 + i, x8 + i + 1, tmp)
            a(f'v_mul_f32 v{x8+i}, v{x8+i}, v{rinv}'); a(f'v_mul_f32 v{x8+i+1}, v{x8+i+1}, v{rinv}')
            self.round2(x8 + i, x8 + i + 1, tmp)
    def opc8(self, o8, c4, tmp):
        a = self.a
        for i in range(4):
            self.unpack(o8 + 2*i, o8 + 2*i + 1, c4 + i)
            a(f'v_add_f32 v{o8+2*i}, 1.0, v{o8+2*i}'); a(f'v_add_f32 v{o8+2*i+1}, 1.0, v{o8+2*i+1}')
            self.round2(o8 + 2*i, o8 + 2*i + 1, tmp)
    def modulate(self, A4, n8, o8, s8, tmp):
        a = self.a
        for i in range(4):
            x0, x1 = n8 + 2*i, n8 + 2*i + 1
            a(f'v_mul_f32 v{x0}, v{x0}, v{o8+2*i}'); a(f'v_mul_f32 v{x1}, v{x1}, v{o8+2*i+1}')
            self.round2(x0, x1, tmp)
            a(f'v_add_f32 v{x0}, v{x0}, v{s8+2*i}'); a(f'v_add_f32 v{x1}, v{x1}, v{s8+2*i+1}')
            a(f'v_cvt_pk_bf16_f32 v{A4+i}, v{x0}, v{x1}')
    def mod_addr(self, vd, vcol, vb, t0, t1):
        a = self.a
        a(f'v_mul_u32_u24 v{t0}, 0xaab, v{vcol}'); a(f'v_lshrrev_b32 v{t0}, 17, v{t0}')
        a(f'v_mul_u32_u24 v{t1}, 48, v{t0}'); a(f'v_sub_u32 v{t1}, v{vcol}, v{t1}')
        a(f'v_mul_u32_u24 v{t0}, 768, v{t0}'); a(f'v_lshl_add_u32 v{t0}, v{t1}, 1, v{t0}')
        a(f'v_mul_u32_u24 v{t1}, 96, v{vb}'); a(f'v_add_u32 v{vd}, v{t0}, v{t1}')

    def build(self):
        a = self.a; cfg = self.cfg
        a(f's_cmp_ge_u32 s{S_WG}, 256')
        a('s_cbranch_scc1 L_end')
        a('s_load_dwordx16 s[16:31], s[0:1], 0')
        a('s_load_dwordx8 s[32:39], s[0:1], 64')
        a('s_load_dwordx4 s[40:43], s[0:1], 96')
        if cfg.stamps:
            for i in range(16): a(f's_mov_b32 s{S_STAMP+i}, 0')
        a('v_lshrrev_b32 v2, 6, v0'); a('v_and_b32 v1, 63, v0')
        a(f'v_readfirstlane_b32 s{S_WAVE}, v2')
        a(f's_and_b32 s{S_X}, s{S_WG}, 7'); a(f's_lshr_b32 s{S_Y}, s{S_WG}, 3')
        a(f's_mov_b32 s{S_PLO}, 0x05040100'); a(f's_mov_b32 s{S_PHI}, 0x07060302')
        a('s_waitcnt lgkmcnt(0)')
        self.stamp(0)
        self.srd(SRD_WS, P_WS, WS_SIZE); self.srd(SRD_DBG, P_DBG, 256)
        a(f's_cmp_ge_u32 s{S_Y}, 16')
        a('s_cbranch_scc1 L_G')
        self.role_S()
        a.label('L_G')
        if cfg.noG: a('s_endpgm')
        self.role_G()
        a.label('L_end')
        a('s_endpgm')
        return a.finalize()

    def role_S(self):
        a = self.a; cfg = self.cfg; D = cfg.depth
        V = Regs(2, 256, 'v')
        vL = 1
        vKs = V.alloc(4); vKr = V.alloc(4); vV = V.alloc(); vQo = V.alloc(); vL16 = V.alloc(); vL4 = V.alloc(); vt = V.alloc(6)
        RA = V.alloc(64, 4); RB = V.alloc(64, 4)
        scO = V.alloc(4, 4); scP = V.alloc(4, 4)
        W = V.mark()
        vQ = V.alloc(16, 4); accS = V.alloc(16, 4); kt = V.alloc(32, 4); sel = V.alloc(8, 4)
        V.release(W)
        e = V.alloc(16, 4); Pm = V.alloc(16, 4); accO = V.alloc(32, 4); T = V.alloc(16, 4); ml = V.alloc(16, 4)
        sB, sKV, sHF, sKb, sVb, sLds, sSo, sSC = [S_T + i for i in range(8)]
        KF = cfg.kvflags
        a(f's_lshr_b32 s{sB}, s{S_Y}, 1'); a(f's_and_b32 s{sHF}, s{S_Y}, 1')
        self.srd(SRD_A, P_K, 0x8000000); self.srd(SRD_B, P_V, 0x8000000)
        a(f's_lshl_b32 s{sKV}, s{sB}, 3'); a(f's_add_u32 s{sKV}, s{sKV}, s{S_X}')
        a(f's_lshl_b32 s{sVb}, s{sKV}, 21'); a(f's_add_u32 s{sVb}, s{sVb}, {6144*256}')
        a(f's_lshl_b32 s{sSo}, s{S_WAVE}, 12'); a(f's_add_u32 s{sVb}, s{sVb}, s{sSo}')
        a(f's_lshl_b32 s{sKb}, s{sHF}, 18'); a(f's_add_u32 s{sKb}, s{sKb}, s{sVb}')
        a(f's_lshl_b32 s{sLds}, s{S_WAVE}, 14')
        a(f'v_lshrrev_b32 v{vt}, 4, v{vL}'); a(f'v_and_b32 v{vt+1}, 15, v{vL}')
        for c in range(4):
            a(f'v_add_u32 v{vt+2}, {4*c}, v{vt}')
            a(f'v_xor_b32 v{vt+3}, v{vt+2}, v{vt+1}')
            a(f'v_lshlrev_b32 v{vt+3}, 4, v{vt+3}')
            a(f'v_lshl_add_u32 v{vKs+c}, v{vt+2}, 8, v{vt+3}')
        nis = [0]
        def throttle():
            if nis[0] >= D: a(f's_waitcnt vmcnt({D-1})')
            nis[0] += 1
        def k_issue(tile, c):
            throttle()
            if c == 0: a(f's_add_u32 s{sSo}, s{sKb}, {tile*32768}')
            a(f's_add_u32 m0, s{sLds}, {(tile & 3)*4096 + c*1024}')
            a(f'buffer_load_dwordx4 v{vKs+c}, s[{SRD_A}:{SRD_A+3}], s{sSo} offen{KF} lds')
        def v_issue(grp, i):
            throttle()
            if (i & 3) == 0:
                a(f's_add_u32 s{sSo}, s{sVb if grp < 2 else sKb}, {(2*(grp & 1) + 4*(i >> 2))*32768}')
            r = (RB if grp < 2 else RA) + (grp & 1) * 32 + 4 * i
            if cfg.vlin:
                if (i & 3) == 0: a(f's_add_u32 s{sSo}, s{sVb}, {(2*grp + (i >> 2))*32768}')
                a(f'buffer_load_dwordx4 v[{r}:{r+3}], v{vV}, s[{SRD_B}:{SRD_B+3}], s{sSo} offen offset:{(i & 3)*1024}{KF}')
                return
            a(f'buffer_load_dwordx4 v[{r}:{r+3}], v{vV}, s[{SRD_B}:{SRD_B+3}], s{sSo} offen offset:{(i & 3)*256}{KF}')
        a(f'v_lshlrev_b32 v{vL16}, 4, v{vL}')
        a(f's_lshl_b32 s{sSC}, s{sKV}, 1'); a(f's_add_u32 s{sSC}, s{sSC}, s{sHF}'); a(f's_lshl_b32 s{sSC}, s{sSC}, 13')
        a(f's_add_u32 s{sSC}, s{sSC}, {WS_SC}')
        sO = S_T + 8
        a(f's_lshl_b32 s{sO}, s{sB}, 13'); a(f's_lshl_b32 s{S_T+9}, s{S_X}, 10'); a(f's_add_u32 s{sO}, s{sO}, s{S_T+9}')
        a(f's_lshl_b32 s{S_T+9}, s{sHF}, 7'); a(f's_add_u32 s{sO}, s{sO}, s{S_T+9}'); a(f's_add_u32 s{sO}, s{sO}, {WS_O}')
        Lnc = a.newlabel('Lnoclr')
        a(f's_cmp_lg_u32 s{S_WAVE}, {7 if not cfg.noclr else 9}'); a(f's_cbranch_scc1 {Lnc}')
        for i in range(4): a(f'v_mov_b32 v{scO+i}, -1')
        a(f's_add_u32 s{S_T+9}, s{sSC}, 4096')
        for i in range(8):
            a(f'buffer_store_dwordx4 v[{scO}:{scO+3}], v{vL16}, s[{SRD_WS}:{SRD_WS+3}], s{sSC if i < 4 else S_T+9} offen offset:{(i & 3)*1024} sc1')
        a(f'v_lshrrev_b32 v{vt+2}, 3, v{vL}'); a(f'v_and_b32 v{vt+3}, 7, v{vL}'); a(f'v_lshlrev_b32 v{vt+3}, 4, v{vt+3}')
        a(f'v_lshl_add_u32 v{vt+2}, v{vt+2}, 8, v{vt+3}')
        self.set_exec(0xffffffff, 0)
        a(f'buffer_store_dwordx4 v[{scO}:{scO+3}], v{vt+2}, s[{SRD_WS}:{SRD_WS+3}], s{sO} offen sc1')
        self.full_exec()
        a.label(Lnc)
        for c in range(4): k_issue(0, c)
        for t in range(4):
            a(f'v_add_u32 v{vt+2}, {4*t}, v{vt}'); a(f'v_xor_b32 v{vt+2}, v{vt+2}, v{vt+1}')
            a(f'v_lshlrev_b32 v{vt+2}, 4, v{vt+2}'); a(f'v_lshl_add_u32 v{vt+2}, v{vt+1}, 8, v{vt+2}')
            a(f'v_add_u32 v{vKr+t}, s{sLds}, v{vt+2}')
        a(f'v_bfe_u32 v{vt+2}, v{vL}, 3, 1'); a(f'v_lshlrev_b32 v{vt+2}, 15, v{vt+2}')
        a(f'v_lshl_add_u32 v{vt+2}, v{vt}, 10, v{vt+2}'); a(f'v_and_b32 v{vt+3}, 7, v{vL}')
        a(f'v_lshl_add_u32 v{vV}, v{vt+3}, 4, v{vt+2}')
        a(f's_lshl_b32 s{S_T+9}, s{sHF}, 7'); a(f'v_add_u32 v{vV}, s{S_T+9}, v{vV}')
        if cfg.vlin: a(f'v_lshlrev_b32 v{vV}, 4, v{vL}')
        a(f'v_and_b32 v{vt+2}, 3, v{vL}'); a(f'v_lshlrev_b32 v{vt+2}, 8, v{vt+2}'); a(f'v_lshl_add_u32 v{vQo}, v{vt}, 4, v{vt+2}')
        sQ = S_T + 10
        a(f's_lshl_b32 s{S_T+9}, s{sHF}, 7'); a(f's_sub_u32 s{sQ}, s{sO}, s{S_T+9}'); a(f's_sub_u32 s{sQ}, s{sQ}, {WS_O - WS_Q}')
        a(f'v_lshlrev_b32 v{vL4}, 2, v{vL}')
        Lnt = a.newlabel('Lnotok')
        a(f's_cmp_lg_u32 s{S_WAVE}, 7'); a(f's_cbranch_scc1 {Lnt}')
        a('s_waitcnt vmcnt(4)')
        self.token_store(vt + 2)
        a.label(Lnt)
        def k_read(dst, slot):
            for t in range(4):
                a(f'ds_read_b128 v[{dst+4*t}:{dst+4*t+3}], v{vKr+t} offset:{slot*4096}')
        for tile in range(1, 8):
            if tile >= 4: a('s_waitcnt lgkmcnt(0)')
            for c in range(4): k_issue(tile, c)
            if tile <= 4:
                a('s_waitcnt vmcnt(4)')
                k_read(RA + 16 * (tile - 1), tile - 1)
            if tile == 5:
                self.token_issue(vt + 4, vL4)
            if tile == 6:
                self.token_wait(vt + 4, vL4, first_issued_wait=4)
        self.stamp(1)
        a(f's_xor_b32 s{S_T+9}, s{sHF}, 1'); a(f's_lshl_b32 s{S_T+9}, s{S_T+9}, 18')
        a(f's_add_u32 s{S_T+11}, s{sVb}, s{S_T+9}')
        a(f's_mov_b32 s{sVb}, s{sKb}'); a(f's_mov_b32 s{sKb}, s{S_T+11}')
        vq = [(0, i) for i in range(8)] + [(1, i) for i in range(8)] + [(2, i) for i in range(8)] + [(3, i) for i in range(8)]
        vp = [0]
        def vnext(n=1):
            for _ in range(n):
                if vp[0] < len(vq):
                    v_issue(*vq[vp[0]]); vp[0] += 1
        def q_issue():
            for t in range(4):
                a(f'buffer_load_dwordx4 v[{vQ+4*t}:{vQ+4*t+3}], v{vQo}, s[{SRD_WS}:{SRD_WS+3}], s{sQ} offen offset:{64*t} sc1')
        if cfg.pure:
            vnext(16); self.stamp(3); vnext(16)
            a('s_waitcnt vmcnt(0)'); self.stamp(6); self.dump_stamps(RA); a('s_endpgm'); return
        vnext(cfg.q_at)
        q_issue()
        vnext(4)
        self.poll(q_issue, range(vQ, vQ + 16), vt + 2, first_issued_wait=4)
        self.stamp(2)
        k_read(kt, 0); k_read(kt + 16, 1)
        def select_round(dst2):
            for r in range(4):
                a(f'v_mov_b32 v{sel+r}, v{accS+r}')
                for j in range(1, 4):
                    a(f'v_mov_b32_dpp v{sel+r}, v{accS+4*j+r} quad_perm:[0,1,2,3] row_mask:0xf bank_mask:{1 << j:#x}')
            for p in range(2):
                x0, x1 = sel + 2*p, sel + 2*p + 1
                self.round2(x0, x1, sel + 4)
                a(f'v_mul_f32 v{x0}, {SCALE:#x}, v{x0}'); a(f'v_mul_f32 v{x1}, {SCALE:#x}, v{x1}')
                a(f'v_cvt_pk_bf16_f32 v{dst2+p}, v{x0}, v{x1}')
                a(f'v_min_u32 v{dst2+p}, -2, v{dst2+p}')
        for j in range(4):
            for t in range(4): self.mfma(accS + 4*j, RA + 16*j + 4*t, vQ + 4*t, t == 0)
            if j & 1: vnext()
        select_round(scO)
        for j in range(4):
            a(f's_waitcnt lgkmcnt({4 if j < 3 else 0})')
            for t in range(4): self.mfma(accS + 4*j, kt + 16*(j & 1) + 4*t, vQ + 4*t, t == 0)
            if j < 2: k_read(kt + 16*(j & 1), j + 2)
            if j & 1: vnext()
        select_round(scO + 2)
        a(f's_lshl_b32 s{S_T+9}, s{S_WAVE}, 10'); a(f's_add_u32 s{sSC}, s{sSC}, s{S_T+9}')
        a(f'buffer_store_dwordx4 v[{scO}:{scO+3}], v{vL16}, s[{SRD_WS}:{SRD_WS+3}], s{sSC} offen sc1')
        a(f's_xor_b32 s{sSC}, s{sSC}, 8192')
        self.stamp(3)
        def sc_issue():
            a(f'buffer_load_dwordx4 v[{scP}:{scP+3}], v{vL16}, s[{SRD_WS}:{SRD_WS+3}], s{sSC} offen sc1')
        vnext(cfg.sc_gap)
        sc_issue()
        vnext(4)
        self.poll(sc_issue, range(scP, scP + 4), vt + 2, first_issued_wait=4)
        self.stamp(4)
        for i in range(4):
            self.unpack(e + 2*i, e + 2*i + 1, scO + i); self.unpack(e + 8 + 2*i, e + 9 + 2*i, scP + i)
        m, l = vt + 2, vt + 3
        assert m % 2 == 0
        a(f'v_max3_f32 v{m}, v{e}, v{e+1}, v{e+2}')
        for i in range(3, 15, 2): a(f'v_max3_f32 v{m}, v{m}, v{e+i}, v{e+i+1}')
        a(f'v_max_f32 v{m}, v{m}, v{e+15}')
        self.xl_reduce('max', m, vt + 4, vt + 5, (2, 3, 4, 5))
        vnext()
        a(f'v_mul_f32 v{m}, {LOG2E:#x}, v{m}')
        a(f's_mov_b32 s{S_T+9}, {LOG2E:#x}')
        for i in range(16):
            a(f'v_fma_f32 v{e+i}, v{e+i}, s{S_T+9}, -v{m}')
        for i in range(16):
            a(f'v_exp_f32 v{e+i}, v{e+i}')
        vnext()
        a(f'v_add_f32 v{l}, v{e}, v{e+1}'); a(f'v_add_f32 v{vt+4}, v{e+2}, v{e+3}')
        for i in range(4, 16, 2):
            a(f'v_add_f32 v{l}, v{l}, v{e+i}'); a(f'v_add_f32 v{vt+4}, v{vt+4}, v{e+i+1}')
        a(f'v_add_f32 v{l}, v{l}, v{vt+4}')
        self.xl_reduce('add', l, vt + 4, vt + 5, (2, 3, 4, 5))
        a(f'v_and_b32 v{vt+4}, 3, v{vL}'); a(f'v_lshlrev_b32 v{vt+4}, 6, v{vt+4}'); a(f'v_add_u32 v{vt+4}, {LDS_ML}, v{vt+4}')
        a(f's_lshl_b32 s{S_T+9}, s{S_WAVE}, 3'); a(f'v_add_u32 v{vt+5}, s{S_T+9}, v{vt+4}')
        a('s_mov_b64 exec, 0xf')
        a(f'ds_write_b64 v{vt+5}, v[{m}:{m+1}]')
        self.full_exec()
        vnext()
        a('s_waitcnt lgkmcnt(0)'); a('s_barrier')
        for i in range(4): a(f'ds_read_b128 v[{ml+4*i}:{ml+4*i+3}], v{vt+4} offset:{16*i}')
        vnext()
        a('s_waitcnt lgkmcnt(0)')
        M = vt + 4; Ls = vt + 5
        a(f'v_max3_f32 v{M}, v{ml}, v{ml+2}, v{ml+4}'); a(f'v_max3_f32 v{M}, v{M}, v{ml+6}, v{ml+8}')
        a(f'v_max3_f32 v{M}, v{M}, v{ml+10}, v{ml+12}'); a(f'v_max_f32 v{M}, v{M}, v{ml+14}')
        for i in range(8): a(f'v_sub_f32 v{ml+2*i}, v{ml+2*i}, v{M}')
        for i in range(8): a(f'v_exp_f32 v{ml+2*i}, v{ml+2*i}')
        a(f'v_sub_f32 v{m}, v{m}, v{M}'); a(f'v_exp_f32 v{m}, v{m}')
        a(f'v_mul_f32 v{Ls}, v{ml}, v{ml+1}')
        for i in range(1, 8): a(f'v_fmac_f32 v{Ls}, v{ml+2*i}, v{ml+2*i+1}')
        a(f'v_rcp_f32 v{Ls}, v{Ls}')
        a(f'v_mul_f32 v{m}, v{m}, v{Ls}')
        vnext()
        a(f'v_bfe_i32 v{vt+5}, v{vL}, 3, 1'); a(f'v_not_b32 v{vt+4}, v{vt+5}')
        for i in range(16): a(f'v_mul_f32 v{e+i}, v{e+i}, v{m}')
        for g2 in range(2):
            for i in range(4):
                a(f'v_cvt_pk_bf16_f32 v{T}, v{e+8*g2+2*i}, v{e+8*g2+2*i+1}')
                a(f'v_and_b32 v{Pm+8*g2+i}, v{T}, v{vt+4}'); a(f'v_and_b32 v{Pm+8*g2+4+i}, v{T}, v{vt+5}')
        self.stamp(5)
        def pv(grp, first):
            R = (RB if grp < 2 else RA) + (grp & 1) * 32
            A = Pm + 4 * grp
            for d in range(4):
                tb = T + 8 * (d & 1)
                for ee in range(2):
                    for kk in range(4):
                        a(f'v_perm_b32 v{tb+4*ee+kk}, v{R+4*(2*kk+1)+d}, v{R+4*(2*kk)+d}, s{S_PHI if ee else S_PLO}')
                self.mfma(accO + 8*d, A, tb, first); self.mfma(accO + 8*d + 4, A, tb + 4, first)
                if d & 1: vnext()
        rem = lambda: len(vq) - vp[0]
        a(f's_waitcnt vmcnt({max(0, min(D, vp[0] - 16))})')
        pv(0, True); pv(1, False)
        vnext(32)
        a(f'v_and_b32 v{vt+2}, 7, v{vL}'); a(f'v_lshrrev_b32 v{vt+3}, 1, v{vt+2}'); a(f'v_and_b32 v{vt+2}, 1, v{vt+2}')
        a(f'v_lshl_add_u32 v{vt+2}, v{vt+3}, 4, v{vt+2}'); a(f'v_lshlrev_b32 v{vt+2}, 4, v{vt+2}')
        a(f'v_lshl_add_u32 v{vt+2}, v{vt}, 10, v{vt+2}')
        a(f's_lshl_b32 s{S_T+9}, s{S_WAVE}, 12'); a(f'v_add_u32 v{vt+2}, s{S_T+9}, v{vt+2}')
        a(f'v_lshlrev_b32 v{vt+3}, 2, v0')
        a(f'v_and_b32 v{vt+4}, 3, v{vL}'); a(f'v_lshlrev_b32 v{vt+4}, 8, v{vt+4}'); a(f'v_bfe_u32 v{vt+5}, v{vL}, 2, 1')
        a(f'v_lshl_add_u32 v{vt+4}, v{vt+5}, 4, v{vt+4}')
        a(f's_lshl_b32 s{S_T+9}, s{S_WAVE}, 5'); a(f's_add_u32 s{sO}, s{sO}, s{S_T+9}')
        a('s_waitcnt vmcnt(8)')
        pv(2, False)
        a('s_waitcnt vmcnt(0)')
        self.stamp(6)
        pv(3, False)
        self.set_exec(0xff0000ff, 0xff0000ff)
        for i in range(8):
            a(f'ds_write_b128 v{vt+2}, v[{accO+4*i}:{accO+4*i+3}] offset:{32*i}')
        self.full_exec()
        a('s_waitcnt lgkmcnt(0)'); a('s_barrier')
        Lx = a.newlabel('Lsdone')
        a(f's_cmp_ge_u32 s{S_WAVE}, 4'); a(f's_cbranch_scc1 {Lx}')
        self.part_sum(e, RA, vt + 3, 32, 4)
        a(f'v_mov_b32_dpp v{e+1}, v{e} row_ror:8 row_mask:0xf bank_mask:0xf')
        a(f'v_cvt_pk_bf16_f32 v{e}, v{e}, v{e+1}')
        a(f'v_min_u32 v{e}, -2, v{e}')
        self.pack_rows(T, e)
        a('s_mov_b64 exec, 0xff')
        a(f'buffer_store_dwordx4 v[{T}:{T+3}], v{vt+4}, s[{SRD_WS}:{SRD_WS+3}], s{sO} offen sc1')
        a.label(Lx)
        self.stamp(7)
        self.dump_stamps(RA)
        a('s_endpgm')

    def role_G(self):
        a = self.a; cfg = self.cfg
        self.V = V = Regs(2, 256, 'v')
        self.vg, self.vs, self.vc = V.alloc(), V.alloc(), V.alloc()
        self.vk = V.alloc()
        self.vL4 = V.alloc(); self.vtid4 = V.alloc()
        self.vt = V.alloc(8, 2)
        self.vstw, self.vstr = V.alloc(), V.alloc()
        vt = self.vt
        self.lane_gsc(self.vg, self.vs, self.vc, 1)
        a(f'v_lshlrev_b32 v{self.vk}, 5, v{self.vs}'); a(f'v_lshl_add_u32 v{self.vk}, v{self.vg}, 3, v{self.vk}')
        a(f'v_lshlrev_b32 v{self.vL4}, 2, v1'); a(f'v_lshlrev_b32 v{self.vtid4}, 2, v0')
        a(f'v_lshlrev_b32 v{self.vstr}, 6, v{self.vc}'); a(f'v_add_u32 v{self.vstr}, {LDS_ML}, v{self.vstr}')
        a(f's_lshl_b32 s{S_T}, s{S_WAVE}, 3'); a(f'v_add_u32 v{self.vstw}, s{S_T}, v{self.vstr}')
        a(f's_sub_u32 s{S_Y}, s{S_Y}, 16')
        a(f's_cmp_ge_u32 s{S_Y}, 8'); a('s_cbranch_scc1 L_Q')
        m = V.mark()
        self.job_MA()
        a(f's_cmp_ge_u32 s{S_Y}, 4'); a('s_cbranch_scc1 L_DN')
        V.release(m); self.job_WO()
        a.label('L_DN')
        V.release(m); self.job_DN()
        a.label('L_Q')
        V.release(m); self.job_Q()
        V.release(m); self.job_GU()

    def clear_tail_outbox(self, vm1, vtmp):
        a = self.a
    def job_MA(self):
        a = self.a; cfg = self.cfg; V = self.V; vt = self.vt
        vg, vs, vc, vk = self.vg, self.vs, self.vc, self.vk
        raw = V.alloc(32, 4); Bt = V.alloc(24, 4); A4 = V.alloc(4, 4); x8 = V.alloc(16, 4); acc = V.alloc(24, 4); vo = V.alloc(4); d4 = V.alloc(4, 4)
        sTile, sW, sOut, sX1 = S_T + 1, S_T + 2, S_T + 3, S_T + 4
        a(f's_lshl_b32 s{sTile}, s{S_X}, 3'); a(f's_add_u32 s{sTile}, s{sTile}, s{S_Y}')
        self.srd(SRD_A, P_WM, 512 * 6144); self.srd(SRD_B, P_C, 8192)
        a(f's_mul_i32 s{sOut}, s{sTile}, 768'); a(f's_add_u32 s{sOut}, s{sOut}, {WS_MOD}')
        L1 = a.newlabel('Lnc')
        a(f's_cmp_lg_u32 s{S_WAVE}, {9 if cfg.noclr else 0}'); a(f's_cbranch_scc1 {L1}')
        for i in range(4): a(f'v_mov_b32 v{d4+i}, -1')
        a(f'v_lshlrev_b32 v{vo}, 4, v1')
        self.set_exec(0xffffffff, 0xffff)
        a(f'buffer_store_dwordx4 v[{d4}:{d4+3}], v{vo}, s[{SRD_WS}:{SRD_WS+3}], s{sOut} offen sc1')
        self.full_exec()
        a(f's_cmp_ge_u32 s{S_Y}, 4'); a(f's_cbranch_scc1 {L1}')
        self.wo_ids(sX1, S_T + 5, S_T + 6)
        a(f'v_lshrrev_b32 v{vo}, 3, v1'); a(f'v_lshlrev_b32 v{vo}, 11, v{vo}'); a(f'v_lshl_add_u32 v{vo}, v{vc}, 4, v{vo}')
        a(f'buffer_store_dwordx4 v[{d4}:{d4+3}], v{vo}, s[{SRD_WS}:{SRD_WS+3}], s{sX1} offen sc1')
        a.label(L1)
        a(f'v_lshlrev_b32 v{vo}, 10, v{vc}'); a(f'v_lshl_add_u32 v{vo}, v{vk}, 1, v{vo}')
        a(f's_lshl_b32 s{sW}, s{S_WAVE}, 7')
        a(f'buffer_load_dwordx4 v[{A4}:{A4+3}], v{vo}, s[{SRD_B}:{SRD_B+3}], s{sW} offen')
        a(f'v_mul_u32_u24 v{vo+1}, 6144, v{vk}'); a(f'v_mad_u32_u24 v{vo+1}, v{vc}, 12, v{vo+1}')
        a(f's_mul_i32 s{sW}, s{S_WAVE}, {64*6144}'); a(f's_mul_i32 s{S_T+5}, s{sTile}, 96'); a(f's_add_u32 s{sW}, s{sW}, s{S_T+5}')
        self.w_loads(raw, 3, SRD_A, vo + 1, sW, 6144, 1, cfg.wflags)
        a(f'v_lshrrev_b32 v{vo+2}, 5, v1'); a(f'v_mul_u32_u24 v{vo+2}, 1536, v{vo+2}'); a(f'v_mad_u32_u24 v{vo+2}, v{vc}, 64, v{vo+2}')
        a(f'v_mad_u32_u24 v{vo+2}, v{vc}, 64, v{vo+2}'); a(f'v_mad_u32_u24 v{vo+2}, v{vc}, 64, v{vo+2}')
        a(f'v_and_b32 v{vo+3}, 1, v{vg}'); a(f'v_lshl_add_u32 v{vo+2}, v{vo+3}, 4, v{vo+2}')
        a(f's_mul_i32 s{S_T+5}, s{S_WAVE}, 3072'); a(f'v_add_u32 v{vo+2}, s{S_T+5}, v{vo+2}')
        a('s_waitcnt vmcnt(8)')
        L2 = a.newlabel('Lnt')
        a(f's_cmp_lg_u32 s{S_WAVE}, 0'); a(f's_cbranch_scc1 {L2}')
        self.token_store(vt)
        a.label(L2)
        self.stamp(1)
        for i in range(4): self.unpack(x8 + 2*i, x8 + 2*i + 1, A4 + i)
        for i in range(8): a(f'v_mul_f32 v{x8+8+i}, {LOG2E ^ 0x80000000:#x}, v{x8+i}')
        for i in range(8): a(f'v_exp_f32 v{x8+8+i}, v{x8+8+i}')
        for i in range(8): a(f'v_add_f32 v{x8+8+i}, 1.0, v{x8+8+i}')
        for i in range(8): a(f'v_rcp_f32 v{x8+8+i}, v{x8+8+i}')
        for i in range(8): a(f'v_mul_f32 v{x8+i}, v{x8+i}, v{x8+8+i}')
        for i in range(4): a(f'v_cvt_pk_bf16_f32 v{A4+i}, v{x8+2*i}, v{x8+2*i+1}')
        a('s_waitcnt vmcnt(0)')
        self.stamp(2)
        if cfg.gstop == 1: self.dump_stamps(raw); a('s_endpgm')
        self.w_transpose(Bt, raw, 3)
        for i in range(6): self.mfma(acc + 4*i, A4, Bt + 4*i, True)
        self.part_write([acc + 4*i for i in range(6)], vo + 2, 32)
        L3 = a.newlabel('Lma')
        a(f's_cmp_ge_u32 s{S_WAVE}, 6'); a(f's_cbranch_scc1 {L3}')
        self.part_sum(x8, raw, self.vtid4, 16, 6)
        self.pack_bf16_store(x8, d4, vo, 96, sOut)
        a.label(L3)
        self.stamp(3)
        a('s_barrier')

    def pack_bf16_store(self, x, d4, vo, bstride, sOut):
        a = self.a
        a(f'v_mov_b32_dpp v{x+1}, v{x} row_ror:8 row_mask:0xf bank_mask:0xf')
        a(f'v_cvt_pk_bf16_f32 v{x}, v{x}, v{x+1}')
        a(f'v_min_u32 v{x}, -2, v{x}')
        self.pack_rows(d4, x)
        a(f'v_mul_u32_u24 v{vo}, {bstride}, v{self.vc}')
        a(f's_lshl_b32 s{S_T}, s{S_WAVE}, 4'); a(f's_add_u32 s{S_T}, s{S_T}, s{sOut}')
        a('s_mov_b64 exec, 0xff')
        a(f'buffer_store_dwordx4 v[{d4}:{d4+3}], v{vo}, s[{SRD_WS}:{SRD_WS+3}], s{S_T} offen sc1')
        self.full_exec()

    def wo_ids(self, sOut, sKs, sCt):
        a = self.a
        a(f's_lshr_b32 s{sKs}, s{S_X}, 2'); a(f's_and_b32 s{sCt}, s{S_X}, 3'); a(f's_lshl_b32 s{sCt}, s{sCt}, 2'); a(f's_add_u32 s{sCt}, s{sCt}, s{S_Y}')
        a(f's_lshl_b32 s{sOut}, s{sKs}, 14'); a(f's_lshl_b32 s{S_T}, s{sCt}, 7'); a(f's_add_u32 s{sOut}, s{sOut}, s{S_T}')
        a(f's_add_u32 s{sOut}, s{sOut}, {WS_X1P}')

    def job_WO(self):
        a = self.a; cfg = self.cfg; V = self.V; vt = self.vt
        vg, vs, vc, vk = self.vg, self.vs, self.vc, self.vk
        raw = V.alloc(64, 4); Bt = V.alloc(64, 4); A = V.alloc(16, 4); acc = V.alloc(16, 4); vo = V.alloc(4); d4 = V.alloc(8, 4)
        sOut, sKs, sCt, sW, sA = S_T + 1, S_T + 2, S_T + 3, S_T + 4, S_T + 5
        self.wo_ids(sOut, sKs, sCt)
        self.srd(SRD_A, P_WO, 4096 * 1024)
        a(f'v_lshlrev_b32 v{vo}, 10, v{vk}'); a(f'v_lshl_add_u32 v{vo}, v{vc}, 3, v{vo}')
        a(f's_lshl_b32 s{sW}, s{sKs}, 3'); a(f's_add_u32 s{sW}, s{sW}, s{S_WAVE}')
        a(f's_lshl_b32 s{sA}, s{sW}, 9'); a(f's_add_u32 s{sA}, s{sA}, {WS_O}')
        a(f's_lshl_b32 s{sW}, s{sW}, 18'); a(f's_lshl_b32 s{S_T}, s{sCt}, 6'); a(f's_add_u32 s{sW}, s{sW}, s{S_T}')
        self.w_loads(raw, 2, SRD_A, vo, sW, 1024, 4, cfg.wflags)
        a(f'v_lshlrev_b32 v{vo+1}, 13, v{vc}'); a(f'v_lshl_add_u32 v{vo+1}, v{vk}, 1, v{vo+1}')
        a(f'v_lshrrev_b32 v{vo+2}, 5, v1'); a(f'v_lshlrev_b32 v{vo+2}, 10, v{vo+2}')
        a(f'v_lshrrev_b32 v{vo+3}, 1, v{vc}'); a(f'v_lshl_add_u32 v{vo+2}, v{vo+3}, 8, v{vo+2}')
        a(f'v_and_b32 v{vo+3}, 1, v{vc}'); a(f'v_lshl_add_u32 v{vo+2}, v{vo+3}, 5, v{vo+2}')
        a(f'v_and_b32 v{vo+3}, 1, v{vg}'); a(f'v_lshl_add_u32 v{vo+2}, v{vo+3}, 4, v{vo+2}')
        a(f's_lshl_b32 s{S_T}, s{S_WAVE}, 11'); a(f'v_add_u32 v{vo+2}, s{S_T}, v{vo+2}')
        a(f'v_lshlrev_b32 v{vo+3}, 11, v{vc}'); a(f'v_lshl_add_u32 v{vo+3}, v{vs}, 4, v{vo+3}')
        a(f's_lshl_b32 s{S_T}, s{S_WAVE}, 5'); a(f's_add_u32 s{sOut}, s{sOut}, s{S_T}')
        for blk in range(4):
            a(f's_waitcnt vmcnt({24 - 8*blk})')
            self.w_transpose(Bt + 16*blk, raw + 16*blk, 2)
        self.token_wait(vt, self.vL4)
        self.stamp(4)
        def issue():
            for blk in range(4):
                a(f'buffer_load_dwordx4 v[{A+4*blk}:{A+4*blk+3}], v{vo+1}, s[{SRD_WS}:{SRD_WS+3}], s{sA} offen offset:{128*blk} sc1')
        self.poll(issue, range(A, A + 16), vt, sleep=cfg.tail_sleep)
        self.stamp(5)
        for blk in range(4):
            for i in range(4): self.mfma(acc + 4*i, A + 4*blk, Bt + 16*blk + 4*i, blk == 0)
        self.part_write([acc + 4*i for i in range(4)], vo + 2, 64)
        L3 = a.newlabel('Lwo')
        a(f's_cmp_ge_u32 s{S_WAVE}, 4'); a(f's_cbranch_scc1 {L3}')
        self.part_sum(vt, raw, self.vtid4, 16, 4)
        a(f'v_min_u32 v{vt}, -2, v{vt}')
        self.pack_rows(d4, vt)
        a('s_mov_b64 exec, 0xffff')
        a(f'buffer_store_dwordx4 v[{d4}:{d4+3}], v{vo+3}, s[{SRD_WS}:{SRD_WS+3}], s{sOut} offen sc1')
        a.label(L3)
        self.stamp(6)
        self.dump_stamps(raw)
        a('s_endpgm')

    def job_Q(self):
        a = self.a; cfg = self.cfg; V = self.V; vt = self.vt
        vg, vs, vc, vk = self.vg, self.vs, self.vc, self.vk
        raw = V.alloc(32, 4); Bt = V.alloc(32, 4); A4 = V.alloc(4, 4); x8 = V.alloc(8, 4); o8 = V.alloc(8, 4); s8 = V.alloc(8, 4)
        sa = V.alloc(4, 4); ca = V.alloc(4, 4); acc = V.alloc(32, 4); vo = V.alloc(6); d4 = V.alloc(4, 4); t20 = V.alloc(20, 4); mean, rinv = V.alloc(), V.alloc()
        sCb, sW, sOut, sAct = S_T + 1, S_T + 2, S_T + 3, S_T + 4
        a(f's_sub_u32 s{sCb}, s{S_Y}, 8')
        a(f's_lshl_b32 s{sOut}, s{S_X}, 10'); a(f's_lshl_b32 s{S_T}, s{sCb}, 7'); a(f's_add_u32 s{sOut}, s{sOut}, s{S_T}')
        self.srd(SRD_A, P_WQ, 512 * 8192); self.srd(SRD_B, P_X, 8192)
        a(f's_lshl_b32 s{sW}, s{S_WAVE}, 19'); a(f's_add_u32 s{sW}, s{sW}, s{sOut}')
        a(f's_add_u32 s{sOut}, s{sOut}, {WS_Q}')
        L1 = a.newlabel('Lnc')
        a(f's_cmp_lg_u32 s{S_WAVE}, {9 if cfg.noclr else 0}'); a(f's_cbranch_scc1 {L1}')
        for i in range(4): a(f'v_mov_b32 v{d4+i}, -1')
        a(f'v_lshrrev_b32 v{vo}, 3, v1'); a(f'v_lshlrev_b32 v{vo}, 13, v{vo}'); a(f'v_lshl_add_u32 v{vo}, v{vc}, 4, v{vo}')
        a(f'buffer_store_dwordx4 v[{d4}:{d4+3}], v{vo}, s[{SRD_WS}:{SRD_WS+3}], s{sOut} offen sc1')
        a(f's_cmp_ge_u32 s{S_Y}, 15'); a(f's_cbranch_scc1 {L1}')
        self.gu_ids(sAct, S_T + 5)
        a(f'v_lshlrev_b32 v{vo}, 4, v1')
        self.set_exec(0xffffffff, 0)
        a(f'buffer_store_dwordx4 v[{d4}:{d4+3}], v{vo}, s[{SRD_WS}:{SRD_WS+3}], s{sAct} offen sc1')
        self.full_exec()
        a.label(L1)
        a(f'v_lshlrev_b32 v{vo}, 10, v{vc}'); a(f'v_lshl_add_u32 v{vo}, v{vk}, 1, v{vo}')
        a(f's_lshl_b32 s{S_T}, s{S_WAVE}, 7')
        a(f'buffer_load_dwordx4 v[{A4}:{A4+3}], v{vo}, s[{SRD_B}:{SRD_B+3}], s{S_T} offen')
        a(f'v_lshlrev_b32 v{vo+1}, 13, v{vk}'); a(f'v_lshl_add_u32 v{vo+1}, v{vc}, 4, v{vo+1}')
        self.w_loads(raw, 4, SRD_A, vo + 1, sW, 8192, 1, cfg.wflags)
        a(f'v_lshrrev_b32 v{vo+2}, 5, v1'); a(f'v_lshlrev_b32 v{vo+2}, 11, v{vo+2}'); a(f'v_lshl_add_u32 v{vo+2}, v{vc}, 8, v{vo+2}')
        a(f'v_and_b32 v{vo+3}, 1, v{vg}'); a(f'v_lshl_add_u32 v{vo+2}, v{vo+3}, 4, v{vo+2}')
        a(f's_lshl_b32 s{S_T}, s{S_WAVE}, 12'); a(f'v_add_u32 v{vo+2}, s{S_T}, v{vo+2}')
        a(f's_lshl_b32 s{S_T}, s{S_WAVE}, 6'); a(f'v_add_u32 v{vo+3}, s{S_T}, v{vk}')
        self.mod_addr(vo + 4, vo + 3, vc, vt, vt + 1)
        a(f'v_add_u32 v{vo+3}, 512, v{vo+3}')
        self.mod_addr(vo + 5, vo + 3, vc, vt, vt + 1)
        a('s_waitcnt vmcnt(8)')
        L2 = a.newlabel('Lnt')
        a(f's_cmp_lg_u32 s{S_WAVE}, 0'); a(f's_cbranch_scc1 {L2}')
        self.token_store(vt)
        a.label(L2)
        self.stamp(1)
        for i in range(4): self.unpack(x8 + 2*i, x8 + 2*i + 1, A4 + i)
        self.ln_stats(x8, mean, rinv, t20, self.vstw, self.vstr)
        self.ln_apply(x8, mean, rinv, vt)
        a('s_waitcnt vmcnt(0)')
        if cfg.gstop == 1: self.stamp(2); self.dump_stamps(raw); a('s_endpgm')
        self.w_transpose(Bt, raw, 4)
        self.token_wait(vt, self.vL4)
        self.stamp(2)
        def issue():
            a(f'buffer_load_dwordx4 v[{sa}:{sa+3}], v{vo+4}, s[{SRD_WS}:{SRD_WS+3}], 0 offen sc1')
            a(f'buffer_load_dwordx4 v[{ca}:{ca+3}], v{vo+5}, s[{SRD_WS}:{SRD_WS+3}], 0 offen sc1')
        self.poll(issue, range(sa, sa + 8), vt, sleep=2)
        self.stamp(3)
        self.opc8(o8, ca, vt)
        for i in range(4): self.unpack(s8 + 2*i, s8 + 2*i + 1, sa + i)
        self.modulate(A4, x8, o8, s8, vt)
        for i in range(8): self.mfma(acc + 4*i, A4, Bt + 4*i, True)
        self.part_write([acc + 4*i for i in range(8)], vo + 2, 32)
        self.part_sum(x8, raw, self.vtid4, 16, 8)
        self.pack_bf16_store(x8, d4, vo, 8192, sOut)
        self.stamp(4)
        a('s_barrier')
        Lc = a.newlabel('Lgu')
        a(f's_cmp_lt_u32 s{S_Y}, 15'); a(f's_cbranch_scc1 {Lc}')
        self.dump_stamps(raw)
        a('s_endpgm')
        a.label(Lc)

    def gu_ids(self, sAct, sTile):
        a = self.a
        a(f's_mul_i32 s{sTile}, s{S_X}, 7'); a(f's_add_u32 s{sTile}, s{sTile}, s{S_Y}'); a(f's_sub_u32 s{sTile}, s{sTile}, 8')
        a(f's_lshl_b32 s{sAct}, s{sTile}, 9'); a(f's_add_u32 s{sAct}, s{sAct}, {WS_ACT}')

    def x1_compute(self, x8, p0, p1, ga8, xin8, tmp, n=8):
        a = self.a
        for i in range(0, n, 2):
            a(f'v_add_f32 v{x8+i}, v{p0+i}, v{p1+i}'); a(f'v_add_f32 v{x8+i+1}, v{p0+i+1}, v{p1+i+1}')
            self.round2(x8 + i, x8 + i + 1, tmp)
            a(f'v_mul_f32 v{x8+i}, v{x8+i}, v{ga8+i}'); a(f'v_mul_f32 v{x8+i+1}, v{x8+i+1}, v{ga8+i+1}')
            self.round2(x8 + i, x8 + i + 1, tmp)
            a(f'v_add_f32 v{x8+i}, v{x8+i}, v{xin8+i}'); a(f'v_add_f32 v{x8+i+1}, v{x8+i+1}, v{xin8+i+1}')
            self.round2(x8 + i, x8 + i + 1, tmp)

    def job_GU(self):
        a = self.a; cfg = self.cfg; V = self.V; vt = self.vt
        vg, vs, vc, vk = self.vg, self.vs, self.vc, self.vk
        raw = V.alloc(32, 4); Bt = V.alloc(32, 4); A4 = V.alloc(4, 4); x8 = V.alloc(8, 4); o8 = V.alloc(8, 4); s8 = V.alloc(8, 4)
        ga8 = V.alloc(8, 4); xin8 = V.alloc(8, 4); m12 = V.alloc(12, 4); P = V.alloc(16, 4)
        acc = V.alloc(32, 4); vo = V.alloc(8); d4 = V.alloc(4, 4); t20 = V.alloc(20, 4); mean, rinv = V.alloc(), V.alloc()
        sAct, sTile, sW, sW2, sP = S_T + 1, S_T + 2, S_T + 3, S_T + 4, S_T + 5
        self.gu_ids(sAct, sTile)
        self.srd(SRD_A, P_WG, 512 * 3584); self.srd(SRD_C, P_WU, 512 * 3584); self.srd(SRD_B, P_X, 8192)
        a(f'v_lshlrev_b32 v{vo}, 10, v{vc}'); a(f'v_lshl_add_u32 v{vo}, v{vk}, 1, v{vo}')
        a(f's_lshl_b32 s{S_T}, s{S_WAVE}, 7')
        a(f'buffer_load_dwordx4 v[{A4}:{A4+3}], v{vo}, s[{SRD_B}:{SRD_B+3}], s{S_T} offen')
        a(f'v_mul_u32_u24 v{vo+1}, 3584, v{vk}'); a(f'v_lshl_add_u32 v{vo+1}, v{vc}, 3, v{vo+1}')
        a(f's_mul_i32 s{sW}, s{S_WAVE}, {64*3584}'); a(f's_lshl_b32 s{S_T}, s{sTile}, 6'); a(f's_add_u32 s{sW}, s{sW}, s{S_T}')
        a(f's_mov_b32 s{sW2}, s{sW}')
        self.w_loads(raw, 2, SRD_A, vo + 1, sW, 3584, 1, cfg.wflags)
        self.w_loads(raw + 16, 2, SRD_C, vo + 1, sW2, 3584, 1, cfg.wflags)
        a(f'v_lshrrev_b32 v{vo+2}, 5, v1'); a(f'v_lshlrev_b32 v{vo+2}, 11, v{vo+2}'); a(f'v_lshl_add_u32 v{vo+2}, v{vc}, 8, v{vo+2}')
        a(f'v_and_b32 v{vo+3}, 1, v{vg}'); a(f'v_lshl_add_u32 v{vo+2}, v{vo+3}, 4, v{vo+2}')
        a(f's_lshl_b32 s{S_T}, s{S_WAVE}, 12'); a(f'v_add_u32 v{vo+2}, s{S_T}, v{vo+2}')
        a(f's_lshl_b32 s{S_T}, s{S_WAVE}, 6'); a(f's_add_u32 s{S_T}, s{S_T}, 1024'); a(f'v_add_u32 v{vo+3}, s{S_T}, v{vk}')
        for i in range(3):
            self.mod_addr(vo + 4 + i, vo + 3, vc, vt, vt + 1)
            if i < 2: a(f'v_add_u32 v{vo+3}, 512, v{vo+3}')
        a(f'v_lshlrev_b32 v{vo+7}, 11, v{vc}'); a(f'v_lshl_add_u32 v{vo+7}, v{vk}, 2, v{vo+7}')
        a(f's_lshl_b32 s{sP}, s{S_WAVE}, 8'); a(f's_add_u32 s{sP}, s{sP}, {WS_X1P}'); a(f's_add_u32 s{sP+1}, s{sP}, 16384')
        a(f'v_lshlrev_b32 v{vo+3}, 6, v{vc}')
        a(f's_lshl_b32 s{S_T}, s{S_WAVE}, 3'); a(f's_add_u32 s{sAct}, s{sAct}, s{S_T}')
        a('s_waitcnt vmcnt(0)')
        for i in range(4): self.unpack(xin8 + 2*i, xin8 + 2*i + 1, A4 + i)
        self.w_transpose(Bt, raw, 2); self.w_transpose(Bt + 16, raw + 16, 2)
        def issue_m():
            for i in range(3):
                a(f'buffer_load_dwordx4 v[{m12+4*i}:{m12+4*i+3}], v{vo+4+i}, s[{SRD_WS}:{SRD_WS+3}], 0 offen sc1')
        self.poll(issue_m, range(m12, m12 + 12), vt, sleep=4)
        for i in range(4):
            self.unpack(ga8 + 2*i, ga8 + 2*i + 1, m12 + i); self.unpack(s8 + 2*i, s8 + 2*i + 1, m12 + 4 + i)
        self.opc8(o8, m12 + 8, vt)
        self.stamp(5)
        def issue():
            for ks in range(2):
                for hh in range(2):
                    r = P + 8*ks + 4*hh
                    a(f'buffer_load_dwordx4 v[{r}:{r+3}], v{vo+7}, s[{SRD_WS}:{SRD_WS+3}], s{sP+ks} offen offset:{16*hh} sc1')
        self.poll(issue, range(P, P + 16), vt, sleep=cfg.tail_sleep)
        self.stamp(6)
        self.x1_compute(x8, P, P + 8, ga8, xin8, vt)
        self.ln_stats(x8, mean, rinv, t20, self.vstw, self.vstr)
        self.ln_apply(x8, mean, rinv, vt)
        self.modulate(A4, x8, o8, s8, vt)
        for i in range(8): self.mfma(acc + 4*i, A4, Bt + 4*i, True)
        self.part_write([acc + 4*i for i in range(8)], vo + 2, [64*i for i in range(4)] + [64*i + 32 for i in range(4)])
        self.part_sum(x8, raw, self.vtid4, 16, 8)
        g, u = x8, x8 + 1
        a(f'v_mov_b32_dpp v{u}, v{g} row_ror:8 row_mask:0xf bank_mask:0xf')
        self.round2(g, u, vt)
        a(f'v_mul_f32 v{vt+1}, {LOG2E ^ 0x80000000:#x}, v{g}'); a(f'v_exp_f32 v{vt+1}, v{vt+1}'); a(f'v_add_f32 v{vt+1}, 1.0, v{vt+1}')
        a(f'v_rcp_f32 v{vt+1}, v{vt+1}'); a(f'v_mul_f32 v{g}, v{g}, v{vt+1}')
        a(f'v_cvt_pk_bf16_f32 v{vt}, v{g}, v{g}'); a(f'v_lshlrev_b32 v{g}, 16, v{vt}')
        a(f'v_mul_f32 v{g}, v{g}, v{u}')
        self.pack_rows(d4, g)
        a(f'v_cvt_pk_bf16_f32 v{d4}, v{d4}, v{d4+1}'); a(f'v_cvt_pk_bf16_f32 v{d4+1}, v{d4+2}, v{d4+3}')
        a(f'v_min_u32 v{d4}, -2, v{d4}'); a(f'v_min_u32 v{d4+1}, -2, v{d4+1}')
        a('s_mov_b64 exec, 0xff')
        a(f'buffer_store_dwordx2 v[{d4}:{d4+1}], v{vo+3}, s[{SRD_WS}:{SRD_WS+3}], s{sAct} offen sc1')
        self.stamp(7)
        self.dump_stamps(raw)
        a('s_endpgm')

    def job_DN(self):
        a = self.a; cfg = self.cfg; V = self.V; vt = self.vt
        vg, vs, vc, vk = self.vg, self.vs, self.vc, self.vk
        raw = V.alloc(32, 4); Bt = V.alloc(32, 4); A = V.alloc(16, 4); acc = V.alloc(8, 4); vo = V.alloc(8); d4 = V.alloc(4, 4); e8 = V.alloc(8, 2)
        sCt, sW, sA, sOut = S_T + 1, S_T + 2, S_T + 3, S_T + 4
        a(f's_lshl_b32 s{sCt}, s{S_X}, 2'); a(f's_add_u32 s{sCt}, s{sCt}, s{S_Y}'); a(f's_sub_u32 s{sCt}, s{sCt}, 4')
        self.srd(SRD_A, P_WD, 1792 * 1024); self.srd(SRD_B, P_X, 8192); self.srd(SRD_C, P_OUT, 8192)
        a(f'v_lshlrev_b32 v{vo}, 10, v{vk}'); a(f'v_lshl_add_u32 v{vo}, v{vc}, 2, v{vo}')
        a(f's_lshl_b32 s{sW}, s{S_WAVE}, 18'); a(f's_lshl_b32 s{S_T}, s{sCt}, 5'); a(f's_add_u32 s{sW}, s{sW}, s{S_T}')
        self.w_loads(raw, 1, SRD_A, vo, sW, 1024, 4, cfg.wflags)
        a(f'v_lshlrev_b32 v{vo+1}, 9, v{vs}'); a(f'v_lshl_add_u32 v{vo+1}, v{vc}, 6, v{vo+1}'); a(f'v_lshl_add_u32 v{vo+1}, v{vg}, 4, v{vo+1}')
        a(f's_lshl_b32 s{sA}, s{S_WAVE}, 12'); a(f's_add_u32 s{sA}, s{sA}, {WS_ACT}')
        a(f'v_lshrrev_b32 v{vo+2}, 5, v1'); a(f'v_lshlrev_b32 v{vo+2}, 9, v{vo+2}'); a(f'v_lshl_add_u32 v{vo+2}, v{vc}, 6, v{vo+2}')
        a(f'v_and_b32 v{vo+3}, 1, v{vg}'); a(f'v_lshl_add_u32 v{vo+2}, v{vo+3}, 4, v{vo+2}')
        a(f's_lshl_b32 s{S_T}, s{S_WAVE}, 10'); a(f'v_add_u32 v{vo+2}, s{S_T}, v{vo+2}')
        a(f's_lshl_b32 s{S_T}, s{sCt}, 4'); a(f's_lshl_b32 s{S_T+5}, s{S_WAVE}, 3'); a(f's_add_u32 s{S_T}, s{S_T}, s{S_T+5}')
        a(f's_and_b32 s{S_T}, s{S_T}, 511')
        a(f's_lshl_b32 s{sOut}, s{S_T}, 1')
        a(f'v_lshrrev_b32 v{vo+3}, 3, v1'); a(f'v_add_u32 v{vo+3}, s{S_T}, v{vo+3}')
        a(f'v_and_b32 v{vo+3}, 511, v{vo+3}')
        a(f'v_lshlrev_b32 v{vo+4}, 10, v{vc}'); a(f'v_lshl_add_u32 v{vo+4}, v{vo+3}, 1, v{vo+4}')
        a(f'buffer_load_ushort v{e8}, v{vo+4}, s[{SRD_B}:{SRD_B+3}], 0 offen')
        a(f'v_lshlrev_b32 v{vo+4}, 1, v{vo+4}')
        a(f'v_and_b32 v{vo+7}, 0x1fe, v{vo+3}')
        a(f'v_add_u32 v{vo+7}, 1024, v{vo+7}'); self.mod_addr(vo + 5, vo + 7, vc, vt, vt + 1)
        a(f'v_add_u32 v{vo+7}, 1536, v{vo+7}'); self.mod_addr(vo + 6, vo + 7, vc, vt, vt + 1)
        for blk in range(4):
            a(f's_waitcnt vmcnt({25 - 8*blk})')
            self.w_transpose(Bt + 8*blk, raw + 8*blk, 1)
        self.token_wait(vt, self.vL4)
        Lw = a.newlabel('Ldn1')
        a(f's_cmp_ge_u32 s{S_WAVE}, 2'); a(f's_cbranch_scc1 {Lw}')
        ga, gb, p0, p1 = e8 + 2, e8 + 3, e8 + 4, e8 + 5
        def issue_m():
            a(f'buffer_load_dword v{ga}, v{vo+5}, s[{SRD_WS}:{SRD_WS+3}], 0 offen sc1')
            a(f'buffer_load_dword v{gb}, v{vo+6}, s[{SRD_WS}:{SRD_WS+3}], 0 offen sc1')
        self.poll(issue_m, [ga, gb], vt, sleep=4)
        a(f'v_lshlrev_b32 v{vt+1}, 4, v{vs}')
        a(f'v_lshrrev_b32 v{ga}, v{vt+1}, v{ga}'); a(f'v_lshlrev_b32 v{ga}, 16, v{ga}')
        a(f'v_lshrrev_b32 v{gb}, v{vt+1}, v{gb}'); a(f'v_lshlrev_b32 v{gb}, 16, v{gb}')
        a(f'v_lshlrev_b32 v{e8}, 16, v{e8}')
        a(f's_mov_b32 s{S_T}, {WS_X1P}'); a(f's_mov_b32 s{S_T+5}, {WS_X1P + 16384}')
        def issue_p():
            a(f'buffer_load_dword v{p0}, v{vo+4}, s[{SRD_WS}:{SRD_WS+3}], s{S_T} offen sc1')
            a(f'buffer_load_dword v{p1}, v{vo+4}, s[{SRD_WS}:{SRD_WS+3}], s{S_T+5} offen sc1')
        self.poll(issue_p, [p0, p1], vt, sleep=cfg.tail_sleep)
        rnd = lambda r: (a(f'v_cvt_pk_bf16_f32 v{vt}, v{r}, v{r}'), a(f'v_lshlrev_b32 v{r}, 16, v{vt}'))
        a(f'v_add_f32 v{p0}, v{p0}, v{p1}'); rnd(p0)
        a(f'v_mul_f32 v{p0}, v{p0}, v{ga}'); rnd(p0)
        a(f'v_add_f32 v{p0}, v{p0}, v{e8}'); rnd(p0)
        a.label(Lw)
        self.stamp(4)
        L7 = a.newlabel('Ldn7')
        a(f's_cmp_eq_u32 s{S_WAVE}, 7'); a(f's_cbranch_scc1 {L7}')
        def issue():
            for blk in range(4):
                a(f'buffer_load_dwordx4 v[{A+4*blk}:{A+4*blk+3}], v{vo+1}, s[{SRD_WS}:{SRD_WS+3}], s{sA} offen offset:{1024*blk} sc1')
        self.poll(issue, range(A, A + 16), vt, sleep=cfg.tail_sleep)
        self.stamp(5)
        for blk in range(4):
            for i in range(2): self.mfma(acc + 4*i, A + 4*blk, Bt + 8*blk + 4*i, blk == 0)
        self.set_exec(0x00ff00ff, 0xff00ff00)
        for i in range(2): a(f'ds_write_b128 v{vo+2}, v[{acc+4*i}:{acc+4*i+3}] offset:{32*i}')
        self.full_exec()
        a.label(L7)
        a('s_waitcnt lgkmcnt(0)'); a('s_barrier')
        L3 = a.newlabel('Ldn')
        a(f's_cmp_ge_u32 s{S_WAVE}, 2'); a(f's_cbranch_scc1 {L3}')
        f = e8 + 6
        self.part_sum(f, raw, self.vtid4, 14, 2)
        rnd(f)
        a(f'v_mul_f32 v{f}, v{f}, v{gb}'); rnd(f)
        a(f'v_add_f32 v{f}, v{f}, v{p0}')
        a(f'v_mov_b32_dpp v{f+1}, v{f} row_ror:8 row_mask:0xf bank_mask:0xf')
        a(f'v_cvt_pk_bf16_f32 v{f}, v{f}, v{f+1}')
        self.pack_rows(d4, f)
        a(f'v_lshlrev_b32 v{vo}, 10, v{vc}')
        a('s_mov_b64 exec, 0xff')
        a(f'buffer_store_dwordx4 v[{d4}:{d4+3}], v{vo}, s[{SRD_C}:{SRD_C+3}], s{sOut} offen')
        a.label(L3)
        self.stamp(6)
        self.dump_stamps(raw)
        a('s_endpgm')

def generate(cfg):
    k = K(cfg)
    body = k.build()
    return HEADER_COMMENTS + f"""; @launch grid=(256,1,1) block=(512,1,1) lds={LDS_BYTES}
.amdgcn_target "amdgcn-amd-amdhsa--gfx950"
.text
.globl {KNAME}_kernel
.p2align 8
.type {KNAME}_kernel,@function
{KNAME}_kernel:
{body}
.section .rodata,"a"
.p2align 6
.amdhsa_kernel {KNAME}_kernel
  .amdhsa_next_free_vgpr 256
  .amdhsa_next_free_sgpr 102
  .amdhsa_accum_offset 256
  .amdhsa_group_segment_fixed_size 0
  .amdhsa_kernarg_size 112
  .amdhsa_user_sgpr_count 2
  .amdhsa_user_sgpr_kernarg_segment_ptr 1
  .amdhsa_system_sgpr_workgroup_id_x 1
  .amdhsa_float_denorm_mode_32 3
.end_amdhsa_kernel
"""

def make_cfg(**kw):
    c = Cfg()
    c.q_at = 4; c.sc_gap = 6; c.tail_sleep = 2; c.noG = 0; c.notok = 0; c.gstop = 0; c.pure = 0; c.noclr = 0; c.vlin = 0
    for k, v in kw.items(): setattr(c, k, v)
    return c

if __name__ == '__main__':
    ap = argparse.ArgumentParser()
    ap.add_argument('-o', default='k.s')
    ap.add_argument('--stamps', action='store_true')
    ap.add_argument('--set', nargs='*', default=[])
    args = ap.parse_args()
    kw = dict(stamps=args.stamps)
    for s in args.set:
        k, v = s.split('=')
        try: v = int(v)
        except ValueError: v = v.replace('_', ' ')
        kw[k] = v
    open(args.o, 'w').write(generate(make_cfg(**kw)))
```

```python
import sys, argparse
from asmlib import *
from gen_common import HEADER_COMMENTS, KNAME

WS_EPOCH = 0x0
WS_O   = 0x10000
WS_X1P = 0x20000
WS_ACT = 0x30000
CLR_BASE, CLR_BYTES = 0x10000, 0x28000
WS_MOD = 0x40000
WS_Q   = 0x60000
WS_ST  = 0x80000
WS_SC  = 0x100000
WS_TS  = 0x400000
WS_SIZE = 0x800000

LDS_ML = 131072
LDS_BYTES = 131072 + 1024
LOG2E = 0x3fb8aa3b
SCALE = 0x3db504f3
EPS = 0x3727c5ac
TAGC = 0x9E3779B9

S_WG, S_WAVE = 2, 3
P_X, P_K, P_V, P_WQ, P_WO, P_BX, P_WG, P_WU, P_WD, P_C, P_WM, P_OUT, P_DBG, P_WS = [16 + 2 * i for i in range(14)]
SRD_WS, SRD_A, SRD_B, SRD_C, SRD_D = 44, 48, 52, 56, 60
S_PLO, S_PHI, S_X, S_Y = 64, 65, 66, 67
S_T = 68
S_TAG = 78
S_CNT = 79
S_STAMP = 80
S_TM = 96
S_U = 4
WSR = f's[{SRD_WS}:{SRD_WS+3}]'

class Cfg: pass

from gen_kernel import K as KBase

class K(KBase):
    def check_tags(self, grans, vt):
        a = self.a
        tags = []
        for g in grans: tags += [g + 1, g + 3]
        for op, dst in (('min', vt), ('max', vt + 1)):
            if len(tags) == 2:
                a(f'v_{op}_u32 v{dst}, v{tags[0]}, v{tags[1]}'); rest = []
            else:
                a(f'v_{op}3_u32 v{dst}, v{tags[0]}, v{tags[1]}, v{tags[2]}'); rest = tags[3:]
            while len(rest) >= 2:
                a(f'v_{op}3_u32 v{dst}, v{dst}, v{rest[0]}, v{rest[1]}'); rest = rest[2:]
            if rest: a(f'v_{op}_u32 v{dst}, v{dst}, v{rest[0]}')
        a(f'v_xor_b32 v{vt}, s{S_TAG}, v{vt}'); a(f'v_xor_b32 v{vt+1}, s{S_TAG}, v{vt+1}')
        a(f'v_or_b32 v{vt}, v{vt}, v{vt+1}')
        a(f'v_cmp_ne_u32 vcc, 0, v{vt}')
    def pollx(self, issue, check, sleep=1, first_issued_wait=None):
        a = self.a
        Lp, Lc, Ld = a.newlabel('Lpoll'), a.newlabel('Lchk'), a.newlabel('Ldone')
        a(f's_mov_b32 s{S_CNT}, 0')
        if first_issued_wait is not None:
            a(f's_waitcnt vmcnt({first_issued_wait})'); a(f's_branch {Lc}')
        a.label(Lp)
        issue()
        a('s_waitcnt vmcnt(0)')
        a.label(Lc)
        check()
        a(f's_cbranch_vccz {Ld}')
        if sleep: a(f's_sleep {sleep}')
        a(f's_add_u32 s{S_CNT}, s{S_CNT}, 1')
        a(f's_cmp_lt_u32 s{S_CNT}, {self.cfg.spin_cap}')
        a(f's_cbranch_scc1 {Lp}')
        a.label(Ld)
    def hint_wait(self, soff, vt, sleep):
        a = self.a
        if not self.cfg.hints: return
        a('s_mov_b64 exec, 1')
        def issue(): a(f'buffer_load_dword v{vt}, off, {WSR}, s{soff} sc1')
        def check(): a(f'v_cmp_eq_u32 vcc, -1, v{vt}')
        self.pollx(issue, check, sleep=sleep)
        self.full_exec()
    def get_tag(self, vE):
        a = self.a
        a(f'v_readfirstlane_b32 s{S_TAG}, v{vE}')
        a(f's_add_u32 s{S_TAG}, s{S_TAG}, {TAGC:#x}')
    def untag(self, dst, g0, g1):
        a = self.a
        a(f'v_mov_b32 v{dst}, v{g0}'); a(f'v_mov_b32 v{dst+1}, v{g0+2}'); a(f'v_mov_b32 v{dst+2}, v{g1}'); a(f'v_mov_b32 v{dst+3}, v{g1+2}')
    def pack_tag_store(self, x, g4, vo, sOut):
        a = self.a
        a(f'v_mov_b32_dpp v{x+1}, v{x} row_ror:8 row_mask:0xf bank_mask:0xf')
        a(f'v_cvt_pk_bf16_f32 v{g4}, v{x}, v{x+1}')
        a(f'v_mov_b32 v{g4+1}, s{S_TAG}'); a(f'v_mov_b32 v{g4+2}, v{g4}'); a(f'v_mov_b32 v{g4+3}, s{S_TAG}')
        a(f'v_permlane16_swap_b32 v{g4}, v{g4+2}')
        self.set_exec(0xff, 0xff)
        a(f'buffer_store_dwordx4 v[{g4}:{g4+3}], v{vo}, {WSR}, s{sOut} offen sc1')
        self.full_exec()

    def build(self):
        a = self.a; cfg = self.cfg
        a(f's_cmp_ge_u32 s{S_WG}, 256')
        a('s_cbranch_scc1 L_end')
        a('s_load_dwordx16 s[16:31], s[0:1], 0')
        a('s_load_dwordx8 s[32:39], s[0:1], 64')
        a('s_load_dwordx4 s[40:43], s[0:1], 96')
        if cfg.stamps:
            for i in range(16): a(f's_mov_b32 s{S_STAMP+i}, 0')
        a('v_lshrrev_b32 v2, 6, v0'); a('v_and_b32 v1, 63, v0')
        a(f'v_readfirstlane_b32 s{S_WAVE}, v2')
        a(f's_and_b32 s{S_X}, s{S_WG}, 7'); a(f's_lshr_b32 s{S_Y}, s{S_WG}, 3')
        a(f's_mov_b32 s{S_PLO}, 0x05040100'); a(f's_mov_b32 s{S_PHI}, 0x07060302')
        self.V = V = Regs(2, 256, 'v')
        self.vg, self.vs, self.vc, self.vk = V.alloc(), V.alloc(), V.alloc(), V.alloc()
        self.vE, self.vtid4, self.vL16 = V.alloc(), V.alloc(), V.alloc()
        self.vstw, self.vstr = V.alloc(), V.alloc()
        self.vt = V.alloc(8, 2)
        self.lane_gsc(self.vg, self.vs, self.vc, 1)
        a(f'v_lshlrev_b32 v{self.vL16}, 4, v1')
        a('s_waitcnt lgkmcnt(0)')
        self.stamp(0)
        self.srd(SRD_WS, P_WS, WS_SIZE)
        a(f's_cmp_ge_u32 s{S_Y}, 16')
        a('s_cbranch_scc1 L_V')
        m = V.mark()
        self.role_K()
        a.label('L_V')
        V.release(m)
        self.role_V()
        a.label('L_end')
        a('s_endpgm')
        return a.finalize()

    def common_late(self):
        a = self.a
        a(f'v_lshlrev_b32 v{self.vk}, 5, v{self.vs}'); a(f'v_lshl_add_u32 v{self.vk}, v{self.vg}, 3, v{self.vk}')
        a(f'v_lshlrev_b32 v{self.vtid4}, 2, v0')
        a(f'v_lshlrev_b32 v{self.vstr}, 6, v{self.vc}'); a(f'v_add_u32 v{self.vstr}, {LDS_ML}, v{self.vstr}')
        a(f's_lshl_b32 s{S_U}, s{S_WAVE}, 3'); a(f'v_add_u32 v{self.vstw}, s{S_U}, v{self.vstr}')
    def epoch_load(self):
        self.a(f'buffer_load_dword v{self.vE}, off, {WSR}, 0 offset:{WS_EPOCH} sc1')

    def role_K(self):
        a = self.a; cfg = self.cfg; D = cfg.kdepth; V = self.V; vt = self.vt; vg = self.vg
        m0 = V.mark()
        vKs = V.alloc(4); vKr = V.alloc(4); vQo = V.alloc(); vn = V.alloc()
        RA = V.alloc(64, 4); qraw = V.alloc(8, 4); vQ = V.alloc(16, 4); accS = V.alloc(16, 4); kt = V.alloc(32, 4)
        sel = V.alloc(8, 4); G = V.alloc(12, 4); e = V.alloc(8, 4)
        sB, sKV, sHF, sKb, sLds, sSo, sSC, sQ, sST = [S_T + i for i in range(9)]
        KF = cfg.kvflags
        a(f's_lshr_b32 s{sB}, s{S_Y}, 1'); a(f's_and_b32 s{sHF}, s{S_Y}, 1')
        self.srd(SRD_A, P_K, 0x8000000)
        a(f's_lshl_b32 s{sKV}, s{sB}, 3'); a(f's_add_u32 s{sKV}, s{sKV}, s{S_X}')
        a(f's_lshl_b32 s{sKb}, s{sKV}, 21'); a(f's_add_u32 s{sKb}, s{sKb}, {6144*256}')
        a(f's_lshl_b32 s{sSo}, s{S_WAVE}, 12'); a(f's_add_u32 s{sKb}, s{sKb}, s{sSo}')
        a(f's_lshl_b32 s{sSo}, s{sHF}, 18'); a(f's_add_u32 s{sKb}, s{sKb}, s{sSo}')
        a(f's_lshl_b32 s{sLds}, s{S_WAVE}, 14')
        a(f'v_and_b32 v{vn}, 15, v1')
        for c in range(4):
            a(f'v_add_u32 v{vt+2}, {4*c}, v{vg}'); a(f'v_xor_b32 v{vt+3}, v{vt+2}, v{vn}')
            a(f'v_lshlrev_b32 v{vt+3}, 4, v{vt+3}'); a(f'v_lshl_add_u32 v{vKs+c}, v{vt+2}, 8, v{vt+3}')
        nis = [0]
        def k_issue(tile, c):
            if nis[0] >= D: a(f's_waitcnt vmcnt({D-1})')
            nis[0] += 1
            if c == 0: a(f's_add_u32 s{sSo}, s{sKb}, {tile*32768}')
            a(f's_add_u32 m0, s{sLds}, {(tile & 3)*4096 + c*1024}')
            a(f'buffer_load_dwordx4 v{vKs+c}, s[{SRD_A}:{SRD_A+3}], s{sSo} offen{KF} lds')
        for c in range(4): k_issue(0, c)
        self.common_late()
        for t in range(4):
            a(f'v_add_u32 v{vt+2}, {4*t}, v{vg}'); a(f'v_xor_b32 v{vt+2}, v{vt+2}, v{vn}')
            a(f'v_lshlrev_b32 v{vt+2}, 4, v{vt+2}'); a(f'v_lshl_add_u32 v{vt+2}, v{vn}, 8, v{vt+2}')
            a(f'v_add_u32 v{vKr+t}, s{sLds}, v{vt+2}')
        a(f'v_and_b32 v{vt+2}, 3, v1'); a(f'v_lshlrev_b32 v{vt+2}, 8, v{vt+2}'); a(f'v_lshl_add_u32 v{vQo}, v{vg}, 4, v{vt+2}')
        a(f'v_add_u32 v{vQo}, {LDS_ML}, v{vQo}')
        a(f's_lshl_b32 s{sQ}, s{sKV}, 11'); a(f's_add_u32 s{sQ}, s{sQ}, {WS_Q}')
        a(f's_lshl_b32 s{sSC}, s{sKV}, 1'); a(f's_add_u32 s{sSC}, s{sSC}, s{sHF}'); a(f's_lshl_b32 s{sSC}, s{sSC}, 3'); a(f's_add_u32 s{sSC}, s{sSC}, s{S_WAVE}')
        a(f's_lshl_b32 s{sST}, s{sSC}, 6'); a(f's_add_u32 s{sST}, s{sST}, {WS_ST}')
        a(f's_lshl_b32 s{sSC}, s{sSC}, 11'); a(f's_add_u32 s{sSC}, s{sSC}, {WS_SC}')
        def k_read(dst, slot):
            for t in range(4):
                a(f'ds_read_b128 v[{dst+4*t}:{dst+4*t+3}], v{vKr+t} offset:{slot*4096}')
        def q_issue():
            for i in range(2):
                a(f'buffer_load_dwordx4 v[{qraw+4*i}:{qraw+4*i+3}], v{self.vL16}, {WSR}, s{sQ} offen offset:{1024*i} sc1')
        for tile in range(1, 8):
            if tile >= 4: a('s_waitcnt lgkmcnt(0)')
            for c in range(4): k_issue(tile, c)
            if tile <= 4:
                a('s_waitcnt vmcnt(4)')
                k_read(RA + 16 * (tile - 1), tile - 1)
            if tile == 2: self.epoch_load()
        self.stamp(1)
        self.get_tag(self.vE)
        Lq = a.newlabel('Lq')
        a(f's_cmp_lg_u32 s{S_WAVE}, 0'); a(f's_cbranch_scc1 {Lq}')
        self.pollx(q_issue, lambda: self.check_tags([qraw, qraw + 4], vt), sleep=cfg.q_sleep)
        a(f'v_lshlrev_b32 v{vt+2}, 3, v1')
        a(f'v_mov_b32 v{qraw+1}, v{qraw+2}'); a(f'v_mov_b32 v{qraw+5}, v{qraw+6}')
        a(f'v_add_u32 v{vt+2}, {LDS_ML}, v{vt+2}')
        a(f'ds_write_b64 v{vt+2}, v[{qraw}:{qraw+1}]'); a(f'ds_write_b64 v{vt+2}, v[{qraw+4}:{qraw+5}] offset:512')
        a.label(Lq)
        a('s_waitcnt vmcnt(0) lgkmcnt(0)')
        k_read(kt, 0); k_read(kt + 16, 1)
        a('s_barrier')
        self.stamp(2)
        for t in range(4): a(f'ds_read_b128 v[{vQ+4*t}:{vQ+4*t+3}], v{vQo} offset:{64*t}')
        a('s_waitcnt lgkmcnt(0)')
        def select_round(gr, e4):
            for r in range(4):
                a(f'v_mov_b32 v{sel+r}, v{accS+r}')
                for j in range(1, 4):
                    a(f'v_mov_b32_dpp v{sel+r}, v{accS+4*j+r} quad_perm:[0,1,2,3] row_mask:0xf bank_mask:{1 << j:#x}')
            for p in range(2):
                x0, x1 = sel + 2*p, sel + 2*p + 1
                self.round2(x0, x1, sel + 4)
                a(f'v_mul_f32 v{x0}, {SCALE:#x}, v{x0}'); a(f'v_mul_f32 v{x1}, {SCALE:#x}, v{x1}')
                a(f'v_cvt_pk_bf16_f32 v{gr+2*p}, v{x0}, v{x1}')
                a(f'v_mov_b32 v{gr+2*p+1}, s{S_TAG}')
                self.unpack(e4 + 2*p, e4 + 2*p + 1, gr + 2*p)
        for j in range(4):
            for t in range(4): self.mfma(accS + 4*j, RA + 16*j + 4*t, vQ + 4*t, t == 0)
        select_round(G, e)
        a(f'buffer_store_dwordx4 v[{G}:{G+3}], v{self.vL16}, {WSR}, s{sSC} offen sc1')
        for j in range(4):
            if j >= 2: a(f's_waitcnt lgkmcnt({4 if j < 3 else 0})')
            for t in range(4): self.mfma(accS + 4*j, kt + 16*(j & 1) + 4*t, vQ + 4*t, t == 0)
            if j < 2: k_read(kt + 16*(j & 1), j + 2)
        select_round(G + 4, e + 4)
        a(f'buffer_store_dwordx4 v[{G+4}:{G+7}], v{self.vL16}, {WSR}, s{sSC} offen offset:1024 sc1')
        m, l = G + 8, G + 10
        a(f'v_max3_f32 v{m}, v{e}, v{e+1}, v{e+2}'); a(f'v_max3_f32 v{m}, v{m}, v{e+3}, v{e+4}'); a(f'v_max3_f32 v{m}, v{m}, v{e+5}, v{e+6}')
        a(f'v_max_f32 v{m}, v{m}, v{e+7}')
        self.xl_reduce('max', m, vt + 4, vt + 5, (2, 3, 4, 5))
        a(f'v_mul_f32 v{m}, {LOG2E:#x}, v{m}')
        a(f's_mov_b32 s{S_U}, {LOG2E:#x}')
        for i in range(8): a(f'v_fma_f32 v{e+i}, v{e+i}, s{S_U}, -v{m}')
        for i in range(8): a(f'v_exp_f32 v{e+i}, v{e+i}')
        a(f'v_add_f32 v{l}, v{e}, v{e+1}'); a(f'v_add_f32 v{vt+4}, v{e+2}, v{e+3}')
        a(f'v_add_f32 v{l}, v{l}, v{e+4}'); a(f'v_add_f32 v{vt+4}, v{vt+4}, v{e+5}')
        a(f'v_add_f32 v{l}, v{l}, v{e+6}'); a(f'v_add_f32 v{vt+4}, v{vt+4}, v{e+7}'); a(f'v_add_f32 v{l}, v{l}, v{vt+4}')
        self.xl_reduce('add', l, vt + 4, vt + 5, (2, 3, 4, 5))
        a(f'v_mov_b32 v{G+9}, s{S_TAG}'); a(f'v_mov_b32 v{G+11}, s{S_TAG}')
        a('s_mov_b64 exec, 0xf')
        a(f'buffer_store_dwordx4 v[{G+8}:{G+11}], v{self.vL16}, {WSR}, s{sST} offen sc1')
        self.full_exec()
        self.stamp(3)
        a('s_barrier')
        V.release(m0)
        a(f's_cmp_lt_u32 s{S_Y}, 4'); a('s_cbranch_scc1 L_WO')
        a(f's_cmp_lt_u32 s{S_Y}, 8'); a('s_cbranch_scc1 L_DN')
        a(f's_cmp_lt_u32 s{S_Y}, 15'); a('s_cbranch_scc1 L_GU')
        self.dump_stamps(m0 + (-m0) % 4)
        a('s_endpgm')
        a.label('L_WO'); self.job_WO(); V.release(m0)
        a.label('L_DN'); self.job_DN(); V.release(m0)
        a.label('L_GU'); self.job_GU(); V.release(m0)

    def role_V(self):
        a = self.a; cfg = self.cfg; D = cfg.vdepth; V = self.V; vt = self.vt; vg, vs, vc = self.vg, self.vs, self.vc
        vV = V.alloc(); vso = V.alloc(2)
        R = V.alloc(128, 4)
        W = V.mark()
        sB, sKV, sDH, sVb, sSo, sSC, sST, sO = [S_U + 2 + i for i in range(8)]
        KF = cfg.kvflags
        a(f's_sub_u32 s{S_Y}, s{S_Y}, 16')
        self.common_late()
        a(f's_lshr_b32 s{sB}, s{S_Y}, 1'); a(f's_and_b32 s{sDH}, s{S_Y}, 1')
        self.srd(SRD_D, P_V, 0x8000000)
        a(f's_lshl_b32 s{sKV}, s{sB}, 3'); a(f's_add_u32 s{sKV}, s{sKV}, s{S_X}')
        a(f's_lshl_b32 s{sVb}, s{sKV}, 21'); a(f's_add_u32 s{sVb}, s{sVb}, {6144*256}')
        a(f's_lshl_b32 s{sSo}, s{S_WAVE}, 12'); a(f's_add_u32 s{sVb}, s{sVb}, s{sSo}')
        a(f's_lshl_b32 s{sSo}, s{sDH}, 7'); a(f's_add_u32 s{sVb}, s{sVb}, s{sSo}')
        a(f'v_lshlrev_b32 v{vV}, 15, v{vs}'); a(f'v_lshl_add_u32 v{vV}, v{vg}, 10, v{vV}'); a(f'v_lshl_add_u32 v{vV}, v{vc}, 4, v{vV}')
        vq = [(g, i) for g in range(4) for i in range(8)]
        st = dict(p=0, inflight=0)
        def v_issue(grp, i, thr):
            if thr: a(f's_waitcnt vmcnt({D-1})')
            if (i & 3) == 0:
                a(f's_add_u32 s{sSo}, s{sVb}, {(grp >> 1)*262144 + (2*(grp & 1) + 4*(i >> 2))*32768}')
            r = R + 32 * grp + 4 * i
            a(f'buffer_load_dwordx4 v[{r}:{r+3}], v{vV}, s[{SRD_D}:{SRD_D+3}], s{sSo} offen offset:{(i & 3)*256}{KF}')
        a(f's_cmp_lt_u32 s{S_Y}, 6'); a('s_cbranch_scc1 L_MA')
        a(f's_cmp_lt_u32 s{S_Y}, 14'); a('s_cbranch_scc1 L_Q')
        n0 = cfg.v_early
        def early_v():
            self.epoch_load()
            a('s_barrier')
            for n in range(n0): v_issue(*vq[n], False)
        early_v()
        a('s_branch L_VS')
        E0 = R + 4 * n0
        V.release(E0)
        a.label('L_MA'); self.job_MA(early_v, n0); V.release(E0)
        a('s_branch L_VS')
        a.label('L_Q'); self.job_Q(early_v, n0); V.release(W)
        a.label('L_VS')
        self.stamp(5)
        sc = V.alloc(16, 4); stt = V.alloc(4, 4); e = V.alloc(16, 4); Pm = V.alloc(16, 4); accO = V.alloc(32, 4); T = V.alloc(16, 4)
        vp = [n0]
        def vnext(n=1, thr=True):
            for _ in range(n):
                if vp[0] < 32:
                    v_issue(*vq[vp[0]], thr); vp[0] += 1
        a(f's_lshl_b32 s{sSC}, s{sKV}, 4'); a(f's_add_u32 s{sSC}, s{sSC}, s{S_WAVE}'); a(f's_lshl_b32 s{sSC}, s{sSC}, 11'); a(f's_add_u32 s{sSC}, s{sSC}, {WS_SC}')
        a(f's_add_u32 s{S_U}, s{sSC}, 16384')
        a(f's_lshl_b32 s{sST}, s{sKV}, 10'); a(f's_add_u32 s{sST}, s{sST}, {WS_ST}')
        a(f's_lshl_b32 s{sO}, s{sKV}, 10'); a(f's_lshl_b32 s{S_U+1}, s{sDH}, 7'); a(f's_add_u32 s{sO}, s{sO}, s{S_U+1}')
        a(f's_lshl_b32 s{S_U+1}, s{S_WAVE}, 5'); a(f's_add_u32 s{sO}, s{sO}, s{S_U+1}'); a(f's_add_u32 s{sO}, s{sO}, {WS_O}')
        def sc_issue():
            for hf in range(2):
                for kh in range(2):
                    r = sc + 8*hf + 4*kh
                    a(f'buffer_load_dwordx4 v[{r}:{r+3}], v{self.vL16}, {WSR}, s{sSC if hf == 0 else S_U} offen offset:{1024*kh} sc1')
            a(f'buffer_load_dwordx4 v[{stt}:{stt+3}], v{self.vL16}, {WSR}, s{sST} offen sc1')
        vnext(cfg.sc_at - n0)
        self.get_tag(self.vE)
        sc_issue()
        nrest = 32 - vp[0]
        vnext(nrest - cfg.burst); vnext(cfg.burst, thr=False)
        Lok = a.newlabel('Lscok')
        a(f's_waitcnt vmcnt({nrest})')
        self.check_tags([sc, sc + 4, sc + 8, sc + 12, stt], vt)
        a(f's_cbranch_vccz {Lok}')
        self.pollx(lambda: a(f'buffer_load_dwordx4 v[{stt}:{stt+3}], v{self.vL16}, {WSR}, s{sST} offen sc1'), lambda: self.check_tags([stt], vt), sleep=cfg.sc_sleep)
        self.pollx(sc_issue, lambda: self.check_tags([sc, sc + 4, sc + 8, sc + 12, stt], vt), sleep=cfg.sc_sleep)
        a.label(Lok)
        self.stamp(6)
        M, Ls = vt + 2, vt + 3
        a(f'v_mov_b32 v{M}, v{stt}')
        self.xl_reduce('max', M, vt + 4, vt + 5, (2, 3, 4, 5))
        a(f'v_sub_f32 v{Ls}, v{stt}, v{M}'); a(f'v_exp_f32 v{Ls}, v{Ls}'); a(f'v_mul_f32 v{Ls}, v{Ls}, v{stt+2}')
        self.xl_reduce('add', Ls, vt + 4, vt + 5, (2, 3, 4, 5))
        a(f'v_rcp_f32 v{Ls}, v{Ls}')
        for q in range(8): self.unpack(e + 2*q, e + 2*q + 1, sc + 2*q)
        a(f's_mov_b32 s{S_U+1}, {LOG2E:#x}')
        for i in range(16): a(f'v_fma_f32 v{e+i}, v{e+i}, s{S_U+1}, -v{M}')
        for i in range(16): a(f'v_exp_f32 v{e+i}, v{e+i}')
        a(f'v_bfe_i32 v{vt+5}, v1, 3, 1'); a(f'v_not_b32 v{vt+4}, v{vt+5}')
        for i in range(16): a(f'v_mul_f32 v{e+i}, v{e+i}, v{Ls}')
        for g2 in range(2):
            for i in range(4):
                a(f'v_cvt_pk_bf16_f32 v{T}, v{e+8*g2+2*i}, v{e+8*g2+2*i+1}')
                a(f'v_and_b32 v{Pm+8*g2+i}, v{T}, v{vt+4}'); a(f'v_and_b32 v{Pm+8*g2+4+i}, v{T}, v{vt+5}')
        def pv(grp, first):
            Rg = R + 32 * grp
            A = Pm + 4 * grp
            for d in range(4):
                tb = T + 8 * (d & 1)
                for ee in range(2):
                    for kk in range(4):
                        a(f'v_perm_b32 v{tb+4*ee+kk}, v{Rg+4*(2*kk+1)+d}, v{Rg+4*(2*kk)+d}, s{S_PHI if ee else S_PLO}')
                self.mfma(accO + 8*d, A, tb, first); self.mfma(accO + 8*d + 4, A, tb + 4, first)
                if d & 1: vnext()
        def need(grp):
            while vp[0] < 8 * (grp + 1): vnext()
            a(f's_waitcnt vmcnt({vp[0] - 8*(grp+1)})')
        need(0); pv(0, True)
        need(1); pv(1, False)
        a(f'v_lshrrev_b32 v{vt+3}, 1, v{vc}'); a(f'v_and_b32 v{vt+2}, 1, v{vc}')
        a(f'v_lshl_add_u32 v{vt+2}, v{vt+3}, 4, v{vt+2}'); a(f'v_lshlrev_b32 v{vt+2}, 4, v{vt+2}')
        a(f'v_lshl_add_u32 v{vt+2}, v{vg}, 10, v{vt+2}')
        a(f's_lshl_b32 s{S_U+1}, s{S_WAVE}, 12'); a(f's_add_u32 s{S_U+1}, s{S_U+1}, 65536'); a(f'v_add_u32 v{vso}, s{S_U+1}, v{vt+2}')
        a(f'v_add_u32 v{self.vtid4}, 65536, v{self.vtid4}')
        a(f'v_and_b32 v{vt+4}, 3, v1'); a(f'v_lshlrev_b32 v{vt+4}, 8, v{vt+4}'); a(f'v_bfe_u32 v{vt+5}, v1, 2, 1')
        a(f'v_lshl_add_u32 v{vso+1}, v{vt+5}, 4, v{vt+4}')
        vnext(32)
        need(2); pv(2, False)
        need(3)
        self.stamp(7)
        pv(3, False)
        self.set_exec(0xff0000ff, 0xff0000ff)
        for i in range(8):
            a(f'ds_write_b128 v{vso}, v[{accO+4*i}:{accO+4*i+3}] offset:{32*i}')
        self.full_exec()
        a('s_waitcnt lgkmcnt(0)'); a('s_barrier')
        Lx = a.newlabel('Lsdone')
        a(f's_cmp_ge_u32 s{S_WAVE}, 4'); a(f's_cbranch_scc1 {Lx}')
        self.part_sum(e, R, self.vtid4, 32, 4)
        a(f'v_mov_b32_dpp v{e+1}, v{e} row_ror:8 row_mask:0xf bank_mask:0xf')
        a(f'v_cvt_pk_bf16_f32 v{e}, v{e}, v{e+1}')
        a(f'v_min_u32 v{e}, -2, v{e}')
        self.pack_rows(T, e)
        a('s_mov_b64 exec, 0xff')
        a(f'buffer_store_dwordx4 v[{T}:{T+3}], v{vso+1}, {WSR}, s{sO} offen sc1')
        a.label(Lx)
        self.stamp(8)
        self.dump_stamps(R)
        a('s_endpgm')

    def gemv64_addr(self, vpw, vst, bstride):
        a = self.a
        a(f'v_lshrrev_b32 v{vst}, 5, v1'); a(f'v_lshlrev_b32 v{vpw}, 11, v{vst}'); a(f'v_lshl_add_u32 v{vpw}, v{self.vc}, 8, v{vpw}')
        a(f'v_and_b32 v{self.vt}, 1, v{self.vg}'); a(f'v_lshl_add_u32 v{vpw}, v{self.vt}, 4, v{vpw}')
        a(f's_lshl_b32 s{S_T}, s{S_WAVE}, 12'); a(f'v_add_u32 v{vpw}, s{S_T}, v{vpw}')
        if bstride:
            a(f'v_lshlrev_b32 v{vst}, 4, v{vst}'); a(f'v_mad_u32_u24 v{vst}, v{self.vc}, s{bstride}, v{vst}')

    def job_MA(self, early_v, n0):
        a = self.a; cfg = self.cfg; V = self.V; vt = self.vt
        vg, vs, vc, vk = self.vg, self.vs, self.vc, self.vk
        raw = V.alloc(32, 4); Bt = V.alloc(32, 4); A4 = V.alloc(4, 4); x8 = V.alloc(16, 4); vo = V.alloc(4); g4 = V.alloc(4, 4)
        acc = raw
        sTile, sW, sOut, sBs = S_T + 1, S_T + 2, S_T + 3, S_T + 4
        a(f's_lshl_b32 s{sTile}, s{S_Y}, 3'); a(f's_add_u32 s{sTile}, s{sTile}, s{S_X}')
        self.srd(SRD_A, P_WM, 512 * 6144); self.srd(SRD_B, P_C, 8192)
        a(f'v_lshlrev_b32 v{vo}, 10, v{vc}'); a(f'v_lshl_add_u32 v{vo}, v{vk}, 1, v{vo}')
        a(f's_lshl_b32 s{sW}, s{S_WAVE}, 7')
        a(f'buffer_load_dwordx4 v[{A4}:{A4+3}], v{vo}, s[{SRD_B}:{SRD_B+3}], s{sW} offen')
        a(f'v_mul_u32_u24 v{vo+1}, 6144, v{vk}'); a(f'v_lshl_add_u32 v{vo+1}, v{vc}, 4, v{vo+1}')
        a(f's_mul_i32 s{sW}, s{S_WAVE}, {64*6144}'); a(f's_lshl_b32 s{S_T}, s{sTile}, 7'); a(f's_add_u32 s{sW}, s{sW}, s{S_T}')
        self.w_loads(raw, 4, SRD_A, vo + 1, sW, 6144, 1, cfg.wflags)
        L1 = a.newlabel('Lnc')
        a(f's_cmp_ge_u32 s{sTile}, 16'); a(f's_cbranch_scc1 {L1}')
        for i in range(4): a(f'v_mov_b32 v{g4+i}, -1')
        a(f's_lshl_b32 s{S_T}, s{sTile}, 3'); a(f's_add_u32 s{S_T}, s{S_T}, s{S_WAVE}'); a(f's_mul_i32 s{S_T}, s{S_T}, 1280'); a(f's_add_u32 s{S_T}, s{S_T}, {CLR_BASE}')
        a(f'buffer_store_dwordx4 v[{g4}:{g4+3}], v{self.vL16}, {WSR}, s{S_T} offen sc1')
        a('s_mov_b64 exec, 0xffff')
        a(f'buffer_store_dwordx4 v[{g4}:{g4+3}], v{self.vL16}, {WSR}, s{S_T} offen offset:1024 sc1')
        self.full_exec()
        a.label(L1)
        early_v()
        a(f's_mov_b32 s{sBs}, {3072*4}')
        self.gemv64_addr(vo + 2, vo + 3, sBs)
        a(f's_lshl_b32 s{sOut}, s{sTile}, 8'); a(f's_lshl_b32 s{S_T}, s{S_WAVE}, 5'); a(f's_add_u32 s{sOut}, s{sOut}, s{S_T}'); a(f's_add_u32 s{sOut}, s{sOut}, {WS_MOD}')
        a(f's_waitcnt vmcnt({9 + n0})')
        L2 = a.newlabel('Lc')
        self.stamp(1)
        for i in range(4): self.unpack(x8 + 2*i, x8 + 2*i + 1, A4 + i)
        for i in range(8): a(f'v_mul_f32 v{x8+8+i}, {LOG2E ^ 0x80000000:#x}, v{x8+i}')
        for i in range(8): a(f'v_exp_f32 v{x8+8+i}, v{x8+8+i}')
        for i in range(8): a(f'v_add_f32 v{x8+8+i}, 1.0, v{x8+8+i}')
        for i in range(8): a(f'v_rcp_f32 v{x8+8+i}, v{x8+8+i}')
        for i in range(8): a(f'v_mul_f32 v{x8+i}, v{x8+i}, v{x8+8+i}')
        for i in range(4): a(f'v_cvt_pk_bf16_f32 v{A4+i}, v{x8+2*i}, v{x8+2*i+1}')
        a(f's_waitcnt vmcnt({n0})')
        self.get_tag(self.vE)
        self.stamp(2)
        self.w_transpose(Bt, raw, 4)
        for i in range(8): self.mfma(acc + 4*i, A4, Bt + 4*i, True)
        self.part_write([acc + 4*i for i in range(8)], vo + 2, 32)
        self.part_sum(x8, Bt, self.vtid4, 16, 8)
        self.pack_tag_store(x8, g4, vo + 3, sOut)
        self.stamp(3)

    def job_Q(self, early_v, n0):
        a = self.a; cfg = self.cfg; V = self.V; vt = self.vt
        vg, vs, vc, vk = self.vg, self.vs, self.vc, self.vk
        raw = V.alloc(32, 4); Bt = V.alloc(32, 4); A4 = V.alloc(4, 4); x8 = V.alloc(8, 4); o8 = V.alloc(8, 4); s8 = V.alloc(8, 4)
        vo = V.alloc(6); g4 = V.alloc(4, 4); mean, rinv = V.alloc(), V.alloc()
        acc = raw; t20 = Bt; mg = raw
        sCb, sW, sOut, sBs, sM = S_T + 1, S_T + 2, S_T + 3, S_T + 4, S_T + 5
        a(f's_sub_u32 s{sCb}, s{S_Y}, 6')
        a(f's_lshl_b32 s{sOut}, s{S_X}, 10'); a(f's_lshl_b32 s{S_T}, s{sCb}, 7'); a(f's_add_u32 s{sOut}, s{sOut}, s{S_T}')
        self.srd(SRD_A, P_WQ, 512 * 8192); self.srd(SRD_B, P_X, 8192)
        a(f's_lshl_b32 s{sW}, s{S_WAVE}, 19'); a(f's_add_u32 s{sW}, s{sW}, s{sOut}')
        a(f'v_lshlrev_b32 v{vo}, 10, v{vc}'); a(f'v_lshl_add_u32 v{vo}, v{vk}, 1, v{vo}')
        a(f's_lshl_b32 s{S_T}, s{S_WAVE}, 7')
        a(f'buffer_load_dwordx4 v[{A4}:{A4+3}], v{vo}, s[{SRD_B}:{SRD_B+3}], s{S_T} offen')
        a(f'v_lshlrev_b32 v{vo+1}, 13, v{vk}'); a(f'v_lshl_add_u32 v{vo+1}, v{vc}, 4, v{vo+1}')
        self.w_loads(raw, 4, SRD_A, vo + 1, sW, 8192, 1, cfg.wflags)
        early_v()
        a(f's_mov_b32 s{sBs}, {4096*4}')
        self.gemv64_addr(vo + 2, vo + 3, sBs)
        a(f's_lshl_b32 s{sOut}, s{sOut}, 1'); a(f's_lshl_b32 s{S_T}, s{S_WAVE}, 5'); a(f's_add_u32 s{sOut}, s{sOut}, s{S_T}'); a(f's_add_u32 s{sOut}, s{sOut}, {WS_Q}')
        a(f'v_mul_u32_u24 v{vo+4}, {3072*4}, v{vc}'); a(f'v_lshl_add_u32 v{vo+4}, v{vk}, 2, v{vo+4}')
        a(f's_lshl_b32 s{sM}, s{S_WAVE}, 8'); a(f's_add_u32 s{sM}, s{sM}, {WS_MOD}')
        a(f's_waitcnt vmcnt({9 + n0})')
        self.stamp(1)
        for i in range(4): self.unpack(x8 + 2*i, x8 + 2*i + 1, A4 + i)
        self.ln_stats(x8, mean, rinv, t20, self.vstw, self.vstr)
        self.ln_apply(x8, mean, rinv, vt)
        a(f's_waitcnt vmcnt({n0})')
        self.get_tag(self.vE)
        self.w_transpose(Bt, raw, 4)
        self.stamp(2)
        if cfg.mod_hint:
            a(f'v_lshlrev_b32 v{vo+5}, 11, v1'); a(f's_mul_i32 s{S_T}, s{sCb}, {3072*4 + 32}'); a(f's_add_u32 s{S_T}, s{S_T}, s{sM}')
            a('s_mov_b64 exec, 3')
            self.pollx(lambda: a(f'buffer_load_dwordx4 v[{mg}:{mg+3}], v{vo+5}, {WSR}, s{S_T} offen sc1'), lambda: self.check_tags([mg], vt), sleep=cfg.mod_sleep)
            self.full_exec()
        def issue():
            for i in range(4):
                a(f'buffer_load_dwordx4 v[{mg+4*i}:{mg+4*i+3}], v{vo+4}, {WSR}, s{sM} offen offset:{(i >> 1)*2048 + (i & 1)*16} sc1')
        self.pollx(issue, lambda: self.check_tags([mg + 4*i for i in range(4)], vt), sleep=cfg.mod_sleep)
        self.stamp(3)
        for i in range(4):
            self.unpack(s8 + 2*i, s8 + 2*i + 1, mg + 2*i)
            self.unpack(o8 + 2*i, o8 + 2*i + 1, mg + 8 + 2*i)
            a(f'v_add_f32 v{o8+2*i}, 1.0, v{o8+2*i}'); a(f'v_add_f32 v{o8+2*i+1}, 1.0, v{o8+2*i+1}')
            self.round2(o8 + 2*i, o8 + 2*i + 1, vt)
        self.modulate(A4, x8, o8, s8, vt)
        for i in range(8): self.mfma(acc + 4*i, A4, Bt + 4*i, True)
        self.part_write([acc + 4*i for i in range(8)], vo + 2, 32)
        self.part_sum(x8, Bt, self.vtid4, 16, 8)
        self.pack_tag_store(x8, g4, vo + 3, sOut)
        self.stamp(4)

    def job_WO(self):
        a = self.a; cfg = self.cfg; V = self.V; vt = self.vt
        vg, vs, vc, vk = self.vg, self.vs, self.vc, self.vk
        raw = V.alloc(64, 4); Bt = V.alloc(64, 4); A = V.alloc(8, 4); acc = V.alloc(32, 4); vo = V.alloc(4); d4 = V.alloc(4, 4)
        sOut, sKs, sCt, sW, sA, sH = [S_T + 1 + i for i in range(6)]
        a(f's_lshl_b32 s{sCt}, s{S_X}, 2'); a(f's_add_u32 s{sCt}, s{sCt}, s{S_Y}')
        a(f's_lshr_b32 s{sKs}, s{sCt}, 3'); a(f's_and_b32 s{sCt}, s{sCt}, 7')
        self.srd(SRD_A, P_WO, 4096 * 1024)
        a(f'v_lshlrev_b32 v{vo}, 10, v{vk}'); a(f'v_lshl_add_u32 v{vo}, v{vc}, 4, v{vo}')
        a(f's_lshl_b32 s{sW}, s{sKs}, 3'); a(f's_add_u32 s{sW}, s{sW}, s{S_WAVE}')
        a(f's_lshl_b32 s{sA}, s{sW}, 8'); a(f's_add_u32 s{sA}, s{sA}, {WS_O}')
        a(f's_lshl_b32 s{sW}, s{sW}, 17'); a(f's_lshl_b32 s{S_T}, s{sCt}, 7'); a(f's_add_u32 s{sW}, s{sW}, s{S_T}')
        self.w_loads(raw, 4, SRD_A, vo, sW, 1024, 2, cfg.wflags)
        a(f'v_lshlrev_b32 v{vo+1}, 13, v{vc}'); a(f'v_lshl_add_u32 v{vo+1}, v{vk}, 1, v{vo+1}')
        self.gemv64_addr(vo + 2, vo + 3, 0)
        a(f'v_lshlrev_b32 v{vo+3}, 11, v{vc}'); a(f'v_lshl_add_u32 v{vo+3}, v{vs}, 4, v{vo+3}')
        a(f's_lshl_b32 s{sOut}, s{sKs}, 14'); a(f's_lshl_b32 s{S_T}, s{sCt}, 8'); a(f's_add_u32 s{sOut}, s{sOut}, s{S_T}')
        a(f's_lshl_b32 s{S_T}, s{S_WAVE}, 5'); a(f's_add_u32 s{sOut}, s{sOut}, s{S_T}'); a(f's_add_u32 s{sOut}, s{sOut}, {WS_X1P}')
        a(f's_lshl_b32 s{sH}, s{sCt}, 13'); a(f's_add_u32 s{sH}, s{sH}, s{sA}')
        for blk in range(2):
            a(f's_waitcnt vmcnt({8 - 8*blk})')
            self.w_transpose(Bt + 32*blk, raw + 32*blk, 4)
        self.stamp(4)
        self.hint_wait(sH, vt, cfg.hint_sleep)
        def issue():
            for blk in range(2):
                a(f'buffer_load_dwordx4 v[{A+4*blk}:{A+4*blk+3}], v{vo+1}, {WSR}, s{sA} offen offset:{128*blk} sc1')
        self.pollx(issue, lambda: self.check_invalid(range(A, A + 8), vt), sleep=cfg.tail_sleep)
        self.stamp(5)
        for blk in range(2):
            for i in range(8): self.mfma(acc + 4*i, A + 4*blk, Bt + 32*blk + 4*i, blk == 0)
        self.part_write([acc + 4*i for i in range(8)], vo + 2, [32 * (2*(i & 3) + (i >> 2)) for i in range(8)])
        self.part_sum(vt, raw, self.vtid4, 16, 8)
        a(f'v_min_u32 v{vt}, -2, v{vt}')
        self.pack_rows(d4, vt)
        a('s_mov_b64 exec, 0xffff')
        a(f'buffer_store_dwordx4 v[{d4}:{d4+3}], v{vo+3}, {WSR}, s{sOut} offen sc1')
        self.stamp(6)
        self.dump_stamps(raw)
        a('s_endpgm')

    def job_GU(self):
        a = self.a; cfg = self.cfg; V = self.V; vt = self.vt
        vg, vs, vc, vk = self.vg, self.vs, self.vc, self.vk
        raw = V.alloc(32, 4); Bt = V.alloc(32, 4); A4 = V.alloc(4, 4); x8 = V.alloc(8, 4); o8 = V.alloc(8, 4); s8 = V.alloc(8, 4)
        ga8 = V.alloc(8, 4); xin8 = V.alloc(8, 4); P = V.alloc(32, 4)
        acc = V.alloc(32, 4); vo = V.alloc(8); d4 = V.alloc(4, 4); t20 = V.alloc(20, 4); mean, rinv = V.alloc(), V.alloc()
        mg = P
        sAct, sTile, sW, sW2, sM, sH = [S_T + 1 + i for i in range(6)]
        sP = S_U + 2
        a(f's_mul_i32 s{sTile}, s{S_X}, 7'); a(f's_add_u32 s{sTile}, s{sTile}, s{S_Y}'); a(f's_sub_u32 s{sTile}, s{sTile}, 8')
        a(f's_lshl_b32 s{sAct}, s{sTile}, 9'); a(f's_add_u32 s{sAct}, s{sAct}, {WS_ACT}')
        self.srd(SRD_A, P_WG, 512 * 3584); self.srd(SRD_C, P_WU, 512 * 3584); self.srd(SRD_B, P_X, 8192)
        a(f'v_lshlrev_b32 v{vo}, 10, v{vc}'); a(f'v_lshl_add_u32 v{vo}, v{vk}, 1, v{vo}')
        a(f's_lshl_b32 s{S_T}, s{S_WAVE}, 7')
        a(f'buffer_load_dwordx4 v[{A4}:{A4+3}], v{vo}, s[{SRD_B}:{SRD_B+3}], s{S_T} offen')
        a(f'v_mul_u32_u24 v{vo+1}, 3584, v{vk}'); a(f'v_lshl_add_u32 v{vo+1}, v{vc}, 3, v{vo+1}')
        a(f's_mul_i32 s{sW}, s{S_WAVE}, {64*3584}'); a(f's_lshl_b32 s{S_T}, s{sTile}, 6'); a(f's_add_u32 s{sW}, s{sW}, s{S_T}')
        a(f's_mov_b32 s{sW2}, s{sW}')
        self.w_loads(raw, 2, SRD_A, vo + 1, sW, 3584, 1, cfg.wflags)
        self.w_loads(raw + 16, 2, SRD_C, vo + 1, sW2, 3584, 1, cfg.wflags)
        self.gemv64_addr(vo + 2, vo + 3, 0)
        a(f'v_mul_u32_u24 v{vo+4}, {3072*4}, v{vc}'); a(f'v_lshl_add_u32 v{vo+4}, v{vk}, 2, v{vo+4}')
        a(f's_lshl_b32 s{sM}, s{S_WAVE}, 8'); a(f's_add_u32 s{sM}, s{sM}, {WS_MOD + 4096}'); a(f's_add_u32 s{S_U}, s{sM}, 4096')
        a(f'v_lshlrev_b32 v{vo+7}, 11, v{vc}'); a(f'v_lshl_add_u32 v{vo+7}, v{vk}, 2, v{vo+7}')
        a(f's_lshl_b32 s{sP}, s{S_WAVE}, 8'); a(f's_add_u32 s{sP}, s{sP}, {WS_X1P}')
        for ks in range(1, 4): a(f's_add_u32 s{sP+ks}, s{sP}, {16384*ks}')
        a(f'v_lshlrev_b32 v{vo+3}, 6, v{vc}')
        a(f's_lshl_b32 s{S_T}, s{S_WAVE}, 3'); a(f's_add_u32 s{sAct}, s{sAct}, s{S_T}')
        if cfg.gu_hint_prev:
            a(f's_lshl_b32 s{sH}, s{sTile}, 10'); a(f's_lshl_b32 s{S_T}, s{S_WAVE}, 7'); a(f's_add_u32 s{sH}, s{sH}, s{S_T}'); a(f's_add_u32 s{sH}, s{sH}, {WS_O}')
        else:
            a(f's_and_b32 s{sH}, s{sTile}, 31'); a(f's_lshl_b32 s{sH}, s{sH}, 11'); a(f's_add_u32 s{sH}, s{sH}, s{sP}')
        a('s_waitcnt vmcnt(0)')
        for i in range(4): self.unpack(xin8 + 2*i, xin8 + 2*i + 1, A4 + i)
        self.w_transpose(Bt, raw, 2); self.w_transpose(Bt + 16, raw + 16, 2)
        def issue_m():
            for i in range(6):
                so, off = (sM, (i >> 1)*2048 + (i & 1)*16) if i < 4 else (S_U, (i & 1)*16)
                a(f'buffer_load_dwordx4 v[{mg+4*i}:{mg+4*i+3}], v{vo+4}, {WSR}, s{so} offen offset:{off} sc1')
        self.pollx(issue_m, lambda: self.check_tags([mg + 4*i for i in range(6)], vt), sleep=4)
        for i in range(4):
            self.unpack(ga8 + 2*i, ga8 + 2*i + 1, mg + 2*i); self.unpack(s8 + 2*i, s8 + 2*i + 1, mg + 8 + 2*i)
            self.unpack(o8 + 2*i, o8 + 2*i + 1, mg + 16 + 2*i)
            a(f'v_add_f32 v{o8+2*i}, 1.0, v{o8+2*i}'); a(f'v_add_f32 v{o8+2*i+1}, 1.0, v{o8+2*i+1}')
            self.round2(o8 + 2*i, o8 + 2*i + 1, vt)
        self.stamp(4)
        self.hint_wait(sH, vt, cfg.hint_sleep)
        def issue():
            for ks in range(4):
                for hh in range(2):
                    r = P + 8*ks + 4*hh
                    a(f'buffer_load_dwordx4 v[{r}:{r+3}], v{vo+7}, {WSR}, s{sP+ks} offen offset:{16*hh} sc1')
        self.pollx(issue, lambda: self.check_invalid(range(P, P + 32), vt), sleep=cfg.tail_sleep)
        self.stamp(5)
        for i in range(8):
            a(f'v_add_f32 v{P+i}, v{P+i}, v{P+8+i}'); a(f'v_add_f32 v{P+16+i}, v{P+16+i}, v{P+24+i}')
        self.x1_compute(x8, P, P + 16, ga8, xin8, vt)
        self.ln_stats(x8, mean, rinv, t20, self.vstw, self.vstr)
        self.ln_apply(x8, mean, rinv, vt)
        self.modulate(A4, x8, o8, s8, vt)
        for i in range(8): self.mfma(acc + 4*i, A4, Bt + 4*i, True)
        self.part_write([acc + 4*i for i in range(8)], vo + 2, [64*i for i in range(4)] + [64*i + 32 for i in range(4)])
        self.part_sum(x8, raw, self.vtid4, 16, 8)
        g, u = x8, x8 + 1
        a(f'v_mov_b32_dpp v{u}, v{g} row_ror:8 row_mask:0xf bank_mask:0xf')
        self.round2(g, u, vt)
        a(f'v_mul_f32 v{vt+1}, {LOG2E ^ 0x80000000:#x}, v{g}'); a(f'v_exp_f32 v{vt+1}, v{vt+1}'); a(f'v_add_f32 v{vt+1}, 1.0, v{vt+1}')
        a(f'v_rcp_f32 v{vt+1}, v{vt+1}'); a(f'v_mul_f32 v{g}, v{g}, v{vt+1}')
        a(f'v_cvt_pk_bf16_f32 v{vt}, v{g}, v{g}'); a(f'v_lshlrev_b32 v{g}, 16, v{vt}')
        a(f'v_mul_f32 v{g}, v{g}, v{u}')
        self.pack_rows(d4, g)
        a(f'v_cvt_pk_bf16_f32 v{d4}, v{d4}, v{d4+1}'); a(f'v_cvt_pk_bf16_f32 v{d4+1}, v{d4+2}, v{d4+3}')
        a(f'v_min_u32 v{d4}, -2, v{d4}'); a(f'v_min_u32 v{d4+1}, -2, v{d4+1}')
        a('s_mov_b64 exec, 0xff')
        a(f'buffer_store_dwordx2 v[{d4}:{d4+1}], v{vo+3}, {WSR}, s{sAct} offen sc1')
        self.stamp(6)
        self.dump_stamps(raw)
        a('s_endpgm')

    def job_DN(self):
        a = self.a; cfg = self.cfg; V = self.V; vt = self.vt
        vg, vs, vc, vk = self.vg, self.vs, self.vc, self.vk
        raw = V.alloc(32, 4); Bt = V.alloc(32, 4); A = V.alloc(16, 4); acc = V.alloc(8, 4); vo = V.alloc(8); d4 = V.alloc(4, 4); e8 = V.alloc(16, 4)
        sCt, sW, sA, sOut, sH = [S_T + 1 + i for i in range(5)]
        sP = S_U + 2
        a(f's_lshl_b32 s{sCt}, s{S_X}, 2'); a(f's_add_u32 s{sCt}, s{sCt}, s{S_Y}'); a(f's_sub_u32 s{sCt}, s{sCt}, 4')
        self.srd(SRD_A, P_WD, 1792 * 1024); self.srd(SRD_B, P_X, 8192); self.srd(SRD_C, P_OUT, 8192)
        a(f'v_lshlrev_b32 v{vo}, 10, v{vk}'); a(f'v_lshl_add_u32 v{vo}, v{vc}, 2, v{vo}')
        a(f's_lshl_b32 s{sW}, s{S_WAVE}, 18'); a(f's_lshl_b32 s{S_T}, s{sCt}, 5'); a(f's_add_u32 s{sW}, s{sW}, s{S_T}')
        self.w_loads(raw, 1, SRD_A, vo, sW, 1024, 4, cfg.wflags)
        a(f'v_lshlrev_b32 v{vo+1}, 9, v{vs}'); a(f'v_lshl_add_u32 v{vo+1}, v{vc}, 6, v{vo+1}'); a(f'v_lshl_add_u32 v{vo+1}, v{vg}, 4, v{vo+1}')
        a(f's_lshl_b32 s{sA}, s{S_WAVE}, 12'); a(f's_add_u32 s{sA}, s{sA}, {WS_ACT}')
        a(f'v_lshrrev_b32 v{vo+2}, 5, v1'); a(f'v_lshlrev_b32 v{vo+2}, 9, v{vo+2}'); a(f'v_lshl_add_u32 v{vo+2}, v{vc}, 6, v{vo+2}')
        a(f'v_and_b32 v{vo+3}, 1, v{vg}'); a(f'v_lshl_add_u32 v{vo+2}, v{vo+3}, 4, v{vo+2}')
        a(f's_lshl_b32 s{S_T}, s{S_WAVE}, 10'); a(f'v_add_u32 v{vo+2}, s{S_T}, v{vo+2}')
        a(f's_lshl_b32 s{S_T}, s{sCt}, 4'); a(f's_lshl_b32 s{S_U}, s{S_WAVE}, 3'); a(f's_add_u32 s{S_T}, s{S_T}, s{S_U}')
        a(f's_and_b32 s{S_T}, s{S_T}, 511')
        a(f's_lshl_b32 s{sOut}, s{S_T}, 1')
        a(f'v_lshrrev_b32 v{vo+3}, 3, v1'); a(f'v_add_u32 v{vo+3}, s{S_T}, v{vo+3}'); a(f'v_and_b32 v{vo+3}, 511, v{vo+3}')
        a(f'v_lshlrev_b32 v{vo+4}, 10, v{vc}'); a(f'v_lshl_add_u32 v{vo+4}, v{vo+3}, 1, v{vo+4}')
        a(f'buffer_load_ushort v{e8}, v{vo+4}, s[{SRD_B}:{SRD_B+3}], 0 offen')
        a(f'v_lshlrev_b32 v{vo+4}, 1, v{vo+4}')
        a(f'v_lshrrev_b32 v{vo+5}, 1, v{vo+3}'); a(f'v_lshlrev_b32 v{vo+5}, 3, v{vo+5}')
        a(f's_mov_b32 s{S_U}, {3072*4}'); a(f'v_mad_u32_u24 v{vo+5}, v{vc}, s{S_U}, v{vo+5}')
        for ks in range(4): a(f's_mov_b32 s{sP+ks}, {WS_X1P + 16384*ks}')
        a(f's_mov_b32 s{S_U}, {WS_MOD + 4096}'); a(f's_mov_b32 s{S_U+1}, {WS_MOD + 2560*4}')
        a(f's_lshl_b32 s{sH}, s{sCt}, 11'); a(f's_lshl_b32 s{S_T}, s{S_WAVE}, 8'); a(f's_add_u32 s{sH}, s{sH}, s{S_T}'); a(f's_add_u32 s{sH}, s{sH}, {WS_X1P}')
        for blk in range(4):
            a(f's_waitcnt vmcnt({25 - 8*blk})')
            self.w_transpose(Bt + 8*blk, raw + 8*blk, 1)
        Lw = a.newlabel('Ldn1')
        ga, gb, p0 = e8 + 4, e8 + 6, e8 + 8
        rnd = lambda r: (a(f'v_cvt_pk_bf16_f32 v{vt}, v{r}, v{r}'), a(f'v_lshlrev_b32 v{r}, 16, v{vt}'))
        a(f's_cmp_ge_u32 s{S_WAVE}, 2'); a(f's_cbranch_scc1 {Lw}')
        def issue_m():
            a(f'buffer_load_dwordx2 v[{ga}:{ga+1}], v{vo+5}, {WSR}, s{S_U} offen sc1')
            a(f'buffer_load_dwordx2 v[{gb}:{gb+1}], v{vo+5}, {WSR}, s{S_U+1} offen sc1')
        self.pollx(issue_m, lambda: self.check_tags([ga], vt), sleep=4)
        a(f'v_lshlrev_b32 v{vt+1}, 4, v{vs}')
        a(f'v_lshrrev_b32 v{ga}, v{vt+1}, v{ga}'); a(f'v_lshlrev_b32 v{ga}, 16, v{ga}')
        a(f'v_lshrrev_b32 v{gb}, v{vt+1}, v{gb}'); a(f'v_lshlrev_b32 v{gb}, 16, v{gb}')
        a(f'v_lshlrev_b32 v{e8}, 16, v{e8}')
        a.label(Lw)
        self.stamp(4)
        self.hint_wait(sH, vt, cfg.hint_sleep)
        Lw2 = a.newlabel('Ldn2')
        a(f's_cmp_ge_u32 s{S_WAVE}, 2'); a(f's_cbranch_scc1 {Lw2}')
        def issue_p():
            for ks in range(4): a(f'buffer_load_dword v{p0+ks}, v{vo+4}, {WSR}, s{sP+ks} offen sc1')
        self.pollx(issue_p, lambda: self.check_invalid(range(p0, p0 + 4), vt), sleep=cfg.tail_sleep)
        a(f'v_add_f32 v{p0}, v{p0}, v{p0+1}'); a(f'v_add_f32 v{p0+2}, v{p0+2}, v{p0+3}'); a(f'v_add_f32 v{p0}, v{p0}, v{p0+2}'); rnd(p0)
        a(f'v_mul_f32 v{p0}, v{p0}, v{ga}'); rnd(p0)
        a(f'v_add_f32 v{p0}, v{p0}, v{e8}'); rnd(p0)
        a.label(Lw2)
        L7 = a.newlabel('Ldn7')
        a(f's_cmp_eq_u32 s{S_WAVE}, 7'); a(f's_cbranch_scc1 {L7}')
        if cfg.dn_hint_own:
            a(f's_lshl_b32 s{sH}, s{sCt}, 7'); a(f's_add_u32 s{sH}, s{sH}, s{sA}')
            self.hint_wait(sH, vt, cfg.hint_sleep)
        def issue():
            for blk in range(4):
                a(f'buffer_load_dwordx4 v[{A+4*blk}:{A+4*blk+3}], v{vo+1}, {WSR}, s{sA} offen offset:{1024*blk} sc1')
        self.pollx(issue, lambda: self.check_invalid(range(A, A + 16), vt), sleep=cfg.tail_sleep)
        self.stamp(5)
        for blk in range(4):
            for i in range(2): self.mfma(acc + 4*i, A + 4*blk, Bt + 8*blk + 4*i, blk == 0)
        self.set_exec(0x00ff00ff, 0xff00ff00)
        for i in range(2): a(f'ds_write_b128 v{vo+2}, v[{acc+4*i}:{acc+4*i+3}] offset:{32*i}')
        self.full_exec()
        a.label(L7)
        a('s_waitcnt lgkmcnt(0)'); a('s_barrier')
        L3 = a.newlabel('Ldn')
        a(f's_cmp_ge_u32 s{S_WAVE}, 2'); a(f's_cbranch_scc1 {L3}')
        f = e8 + 2
        self.part_sum(f, raw, self.vtid4, 14, 2)
        rnd(f)
        a(f'v_mul_f32 v{f}, v{f}, v{gb}'); rnd(f)
        a(f'v_add_f32 v{f}, v{f}, v{p0}')
        a(f'v_mov_b32_dpp v{f+1}, v{f} row_ror:8 row_mask:0xf bank_mask:0xf')
        a(f'v_cvt_pk_bf16_f32 v{f}, v{f}, v{f+1}')
        self.pack_rows(d4, f)
        a(f'v_lshlrev_b32 v{vo}, 10, v{vc}')
        a('s_mov_b64 exec, 0xff')
        a(f'buffer_store_dwordx4 v[{d4}:{d4+3}], v{vo}, s[{SRD_C}:{SRD_C+3}], s{sOut} offen')
        a.label(L3)
        L4 = a.newlabel('Lep')
        a(f's_cmp_lg_u32 s{sCt}, 0'); a(f's_cbranch_scc1 {L4}')
        a(f's_cmp_lg_u32 s{S_WAVE}, 7'); a(f's_cbranch_scc1 {L4}')
        a('s_mov_b64 exec, 1')
        a(f'v_mov_b32 v{vt}, s{S_TAG}')
        a(f'buffer_store_dword v{vt}, off, {WSR}, 0 offset:{WS_EPOCH} sc1')
        a.label(L4)
        self.stamp(6)
        self.dump_stamps(raw)
        a('s_endpgm')

DEFAULTS = dict(stamps=False, wflags=' nt', kvflags=' nt', spin_cap=400000, kdepth=4, vdepth=4, v_early=8, sc_at=24, burst=4, mod_hint=1, sc_sleep=4, gu_hint_prev=0, dn_hint_own=1,
                q_sleep=2, mod_sleep=2, tail_sleep=1, hint_sleep=4, hints=1, notok=0)

def make_cfg(**kw):
    c = Cfg()
    for k, v in DEFAULTS.items(): setattr(c, k, v)
    for k, v in kw.items(): setattr(c, k, v)
    return c

def generate(cfg):
    import gen_kernel
    gen_kernel.WS_TS = WS_TS
    k = K(cfg)
    body = k.build()
    return HEADER_COMMENTS + f"""; @launch grid=(256,1,1) block=(512,1,1) lds={LDS_BYTES}
.amdgcn_target "amdgcn-amd-amdhsa--gfx950"
.text
.globl {KNAME}_kernel
.p2align 8
.type {KNAME}_kernel,@function
{KNAME}_kernel:
{body}
.section .rodata,"a"
.p2align 6
.amdhsa_kernel {KNAME}_kernel
  .amdhsa_next_free_vgpr 256
  .amdhsa_next_free_sgpr 102
  .amdhsa_accum_offset 256
  .amdhsa_group_segment_fixed_size 0
  .amdhsa_kernarg_size 112
  .amdhsa_user_sgpr_count 2
  .amdhsa_user_sgpr_kernarg_segment_ptr 1
  .amdhsa_system_sgpr_workgroup_id_x 1
  .amdhsa_float_denorm_mode_32 3
.end_amdhsa_kernel
"""

if __name__ == '__main__':
    ap = argparse.ArgumentParser()
    ap.add_argument('-o', default='k2.s')
    ap.add_argument('--stamps', action='store_true')
    ap.add_argument('--set', nargs='*', default=[])
    args = ap.parse_args()
    kw = dict(stamps=args.stamps)
    for s in args.set:
        k, v = s.split('=')
        try: v = int(v)
        except ValueError: v = v.replace('_', ' ')
        kw[k] = v
    open(args.o, 'w').write(generate(make_cfg(**kw)))
```
